```python
import torch

def _softmax(x, axis=-1):
    return torch.softmax(x, dim=axis)
def _gelu(x):
    return torch.nn.functional.gelu(x, approximate="tanh")
def _silu(x):
    return torch.nn.functional.silu(x)
def _sigmoid(x):
    return torch.sigmoid(x)
def _layernorm(x, axis=-1, eps=1e-5):
    m = x.mean(dim=axis, keepdim=True)
    v = x.var(dim=axis, keepdim=True, unbiased=False)
    return (x - m) / torch.sqrt(v + eps)
def _scatter_add(tgt, idx, src, axis=0):
    return tgt.clone().index_add_(axis, idx, src)
def _segment_sum(src, seg, n):
    out = torch.zeros((n,) + src.shape[1:], dtype=src.dtype)
    return out.index_add_(0, seg, src)
def _pad(x, pw):
    flat = tuple(v for pair in reversed(pw) for v in pair)
    return torch.nn.functional.pad(x, flat)

kernel_name = 'gated_mix__linear_attn_block__ssm_conv_s4d__prompt'

def setup_inputs():

    _w = (lambda a: (lambda t: t.to(torch.bfloat16) if t.is_floating_point() else t)(torch.as_tensor(a)))
    def _A_setup():
        B, S, D = 1, 2048, 1024
        return {
            "x": _w((lambda *s: torch.randn(*s, dtype=torch.bfloat16) * 0.05)(B, S, D)),
            "wqkv": _w((lambda *s: torch.randn(*s, dtype=torch.bfloat16) * 0.8)(D, 3 * D)),
            "wo": _w((lambda *s: torch.randn(*s, dtype=torch.bfloat16) * 0.05)(D, D)),
        }
    _A_in = _A_setup()

    def _B_setup():
        Bsz, L, D, N = 1, 2048, 1024, 128
        return {
            "u": _w((lambda *s: torch.randn(*s, dtype=torch.bfloat16) * 0.05)(Bsz, L, D)),
            "log_A_real": _w((lambda *s: torch.randn(*s, dtype=torch.bfloat16) * 3.2)(D, N) * 0.5),
            "A_imag": _w((lambda *s: torch.randn(*s, dtype=torch.bfloat16) * 0.05)(D, N) * 3.14),
            "C_real": _w((lambda *s: torch.randn(*s, dtype=torch.bfloat16) * 0.8)(D, N) / N ** 0.5),
            "C_imag": _w((lambda *s: torch.randn(*s, dtype=torch.bfloat16) * 0.8)(D, N) / N ** 0.5),
            "log_dt": _w((lambda *s: torch.randn(*s, dtype=torch.bfloat16) * 0.05)(D) * 0.5 - 4.0),
            "D_skip": _w((lambda *s: torch.randn(*s, dtype=torch.bfloat16) * 0.1)(D)),
        }
    _B_in = _B_setup()

    return {
        "A_x": _A_in["x"],
        "A_wqkv": _A_in["wqkv"],
        "A_wo": _A_in["wo"],
        "B_u": _B_in["u"],
        "B_log_A_real": _B_in["log_A_real"],
        "B_A_imag": _B_in["A_imag"],
        "B_C_real": _B_in["C_real"],
        "B_C_imag": _B_in["C_imag"],
        "B_log_dt": _B_in["log_dt"],
        "B_D_skip": _B_in["D_skip"],
        "gate_w": _w((lambda *s: torch.randn(*s, dtype=torch.bfloat16) * 0.05)(1024) * 16.0),
    }

def reference(A_x, A_wqkv, A_wo, B_u, B_log_A_real, B_A_imag, B_C_real, B_C_imag, B_log_dt, B_D_skip, gate_w):
    def _A_ref(x, wqkv, wo):
        B, S, D = x.shape
        H = 32; Dh = D // H
        qkv = (lambda x, *d: x.permute(*d))((x @ wqkv).reshape(B, S, 3, H, Dh), 2, 0, 3, 1, 4)
        q, k, v = qkv[0], qkv[1], qkv[2]
        phi = lambda t: torch.where(t > 0, t + 1, torch.exp(t)) + 1e-6
        pq, pk = phi(q), phi(k)
        kv = torch.einsum("bhsd,bhse->bhde", pk, v)
        z = torch.einsum("bhsd->bhd", pk)
        num = torch.einsum("bhqd,bhde->bhqe", pq, kv)
        den = torch.einsum("bhqd,bhd->bhq", pq, z)[..., None] + 1e-6
        o = num / den
        return (lambda x, *d: x.permute(*d))(o, 0, 2, 1, 3).reshape(B, S, D) @ wo

    def _B_ref(u, log_A_real, A_imag, C_real, C_imag, log_dt, D_skip):
        L = u.shape[1]
        dt = torch.exp(log_dt)
        A = -torch.exp(log_A_real) + 1j * A_imag
        C = (C_real + 1j * C_imag) * dt[:, None]
        pos = (lambda x, dt: x.to(dt))(torch.arange(L), log_dt.dtype)
        P = torch.exp((A * dt[:, None])[:, :, None] * pos[None, None, :])
        K = 2.0 * torch.einsum("dn,dnl->dl", C, P).real
        L2 = 2 * L
        u_t = (lambda x, *d: x.permute(*d))(u, 0, 2, 1)
        Kf = (lambda x, *a, **k: torch.fft.rfft(x.float(), *a, **k))(K, L2)
        Uf = (lambda x, *a, **k: torch.fft.rfft(x.float(), *a, **k))(u_t, L2)
        y = (lambda x, *a, **k: torch.fft.irfft(x, *a, **k).to(torch.bfloat16))(Uf * Kf[None, :, :], L2)[:, :, :L]
        y = (lambda x, *d: x.permute(*d))(y, 0, 2, 1)
        return y + u * D_skip[None, None, :]

    x = A_x
    g = _sigmoid((x * gate_w).sum(-1, keepdims=True))
    a = _A_ref(x, A_wqkv, A_wo)
    b = _B_ref(x, B_log_A_real, B_A_imag, B_C_real, B_C_imag, B_log_dt, B_D_skip)
    return g * a + (1 - g) * b
```

```python
import re

class Asm:
    def __init__(self):
        self.lines = []
    def __call__(self, s):
        for l in s.split("\n"):
            l = l.strip()
            if l: self.lines.append(l)
    def raw(self, s):
        for l in s.split("\n"):
            self.lines.append(l)
    def text(self):
        out = []
        for l in self.lines:
            if l.endswith(":") or l.startswith("."): out.append(l)
            else: out.append("    " + l)
        return "\n".join(out) + "\n"

def vr(b, n=1):
    return f"v[{b}:{b+n-1}]" if n > 1 else f"v{b}"
def sr(b, n=1):
    return f"s[{b}:{b+n-1}]" if n > 1 else f"s{b}"

class Regs:
    def __init__(self, start, limit):
        self.next = start; self.limit = limit; self.names = {}; self.hi = start
    def alloc(self, name, n=1, align=1):
        b = (self.next + align - 1) // align * align
        assert b + n <= self.limit, f"out of regs for {name}"
        self.next = b + n; self.hi = max(self.hi, self.next)
        self.names[name] = (b, n)
        return b
    def mark(self): return self.next
    def release(self, m): self.next = m

def kernel_head(a, name):
    a.raw(f".globl {name}\n.p2align 8\n.type {name},@function\n{name}:")

def kernel_desc(name, vgpr, sgpr=102, accum=None, kernarg=112):
    if accum is None:
        accum = (vgpr + 3) // 4 * 4
    return f""".p2align 6
.amdhsa_kernel {name}
  .amdhsa_next_free_vgpr {vgpr}
  .amdhsa_next_free_sgpr {sgpr}
  .amdhsa_accum_offset {accum}
  .amdhsa_group_segment_fixed_size 0
  .amdhsa_kernarg_size {kernarg}
  .amdhsa_user_sgpr_count 2
  .amdhsa_user_sgpr_kernarg_segment_ptr 1
  .amdhsa_system_sgpr_workgroup_id_x 1
.end_amdhsa_kernel
"""

def srd(a, d, ptr, nbytes):
    a(f"""s_mov_b32 s{d}, s{ptr}
    s_mov_b32 s{d+1}, s{ptr+1}
    s_mov_b32 s{d+2}, {nbytes:#x}
    s_mov_b32 s{d+3}, 0x00020000""")

def srd_off(a, d, ptr, off, nbytes):
    a(f"""s_add_u32 s{d}, s{ptr}, {off:#x}
    s_addc_u32 s{d+1}, s{ptr+1}, 0
    s_mov_b32 s{d+2}, {nbytes:#x}
    s_mov_b32 s{d+3}, 0x00020000""")

_REG = re.compile(r"\b([vs])(?:(\d+)|\[(\d+):(\d+)\])|\b(vcc|exec|m0)\b")
TRANS = ("v_exp_f32", "v_log_f32", "v_rcp_f32", "v_rsq_f32", "v_sqrt_f32", "v_sin_f32", "v_cos_f32")

def _regs(tok):
    out = set()
    for m in _REG.finditer(tok):
        if m.group(5): out.add(m.group(5))
        elif m.group(2) is not None: out.add(m.group(1) + m.group(2))
        else:
            for i in range(int(m.group(3)), int(m.group(4)) + 1): out.add(m.group(1) + str(i))
    return out

def _split_ops(s):
    ops = []; depth = 0; cur = ""
    for ch in s:
        if ch == "[": depth += 1
        if ch == "]": depth -= 1
        if ch == "," and depth == 0: ops.append(cur.strip()); cur = ""
        else: cur += ch
    if cur.strip(): ops.append(cur.strip())
    return ops

class Ins:
    def __init__(self, line):
        self.line = line
        body = line.split(";")[0].strip()
        self.label = body.endswith(":")
        self.directive = body.startswith(".")
        self.op = ""; self.dst = set(); self.src = set(); self.kind = "other"
        self.A = set(); self.B = set(); self.C = set(); self.passes = 0
        self.ws = 1; self.dpp = False; self.data = set(); self.wide = False
        if self.label or self.directive or not body:
            self.ws = 0; return
        parts = body.split(None, 1)
        self.op = op = parts[0]
        rest = parts[1] if len(parts) > 1 else ""
        ops = _split_ops(rest)
        if ops:
            last = ops[-1].split()
            mods = " ".join(last[1:]) if len(last) > 1 else ""
            ops[-1] = last[0]
        else: mods = ""
        self.mods = mods
        R = [_regs(o) for o in ops]
        if op == "s_nop":
            self.ws = int(ops[0], 0) + 1; self.kind = "salu"; return
        if op.startswith("v_mfma"):
            self.kind = "mfma"; self.dst = R[0]; self.A = R[1]; self.B = R[2]; self.C = R[3]
            self.src = R[1] | R[2] | R[3]
            self.passes = 8 if "32x32" in op else 4
        elif op.startswith("v_"):
            self.kind = "valu"
            self.dpp = "_dpp" in op or "row_" in mods or "quad_perm" in mods or "wave_" in mods
            if op.startswith("v_cmp"):
                self.dst = R[0]; self.src = set().union(*R[1:])
            elif op.startswith("v_permlane") and "swap" in op:
                self.dst = R[0] | R[1]; self.src = R[0] | R[1]
            elif op.startswith(("v_add_co", "v_sub_co", "v_addc_co", "v_subb_co", "v_subrev_co")):
                self.dst = R[0] | R[1]; self.src = set().union(*R[2:])
            else:
                self.dst = R[0]; self.src = set().union(*R[1:]) if len(R) > 1 else set()
                if op.startswith(("v_fmac", "v_dot2c", "v_pk_fmac", "v_writelane")) or self.dpp or "d16" in op or "sdwa" in op:
                    self.src |= R[0]
                if op.startswith("v_cndmask") and len(ops) == 3: self.src.add("vcc")
        elif op.startswith("ds_"):
            self.kind = "ds"
            if op.startswith(("ds_read", "ds_bpermute", "ds_permute", "ds_swizzle")) or "rtn" in op:
                self.dst = R[0]; self.src = set().union(*R[1:])
            else:
                self.src = set().union(*R)
        elif op.startswith(("buffer_", "global_")):
            self.kind = "vmem"
            if " lds" in (" " + mods):
                self.src = set().union(*R) | {"m0"}; self.lds = True
            elif op.startswith(("buffer_load", "global_load")):
                self.dst = R[0]; self.src = set().union(*R[1:])
            else:
                self.src = set().union(*R) if R else set()
                if op.startswith("buffer_store"): self.data = R[0]
                elif op.startswith("global_store"): self.data = R[1]
                self.wide = op.endswith(("x3", "x4"))
                if "atomic" in op and "sc0" in mods: self.dst = R[0]
        elif op.startswith("s_"):
            self.kind = "salu"
            if op.startswith(("s_cmp", "s_cbranch", "s_branch", "s_waitcnt", "s_barrier", "s_endpgm", "s_setprio", "s_sleep", "s_setpc")):
                self.src = set().union(*R) if R else set()
            else:
                self.dst = R[0] if R else set(); self.src = set().union(*R[1:]) if len(R) > 1 else set()
                if "saveexec" in op: self.dst = self.dst | {"exec"}

def _need(p, c):
    n = 0
    vd = {r for r in p.dst if r[0] == "v" and r != "vcc"}
    sd = p.dst - vd
    if p.kind == "valu":
        if c.kind == "mfma" and vd & c.src: n = max(n, 2)
        if c.kind == "mfma" and "exec" in sd: n = max(n, 4)
        if p.op.replace("_e64", "").replace("_e32", "") in TRANS and vd & c.src: n = max(n, 1)
        if sd:
            if c.kind == "valu" and sd & c.src:
                n = max(n, 4 if c.op.startswith(("v_readlane", "v_writelane")) else 2)
            if c.kind == "vmem" and sd & c.src: n = max(n, 5)
            if c.kind == "salu" and sd & c.src: n = max(n, 1)
        if c.kind == "valu" and vd & c.src:
            if c.op.startswith(("v_readfirstlane", "v_readlane")): n = max(n, 1)
            if c.dpp: n = max(n, 2)
            if c.op.startswith("v_permlane"): n = max(n, 2)
            if "dst_sel" in p.mods or ("op_sel" in p.mods and not p.op.startswith("v_pk")): n = max(n, 1)
        if p.op.startswith("v_dot"):
            if vd & (c.src | c.dst) and not (c.op == p.op and not (vd & _ab(c))): n = max(n, 3)
    if p.kind == "mfma":
        big = 12 if p.passes == 8 else 8
        if c.kind == "mfma":
            if p.dst & (c.A | c.B): n = max(n, big)
            if p.dst & c.C and not (p.dst == c.C and p.passes == c.passes): n = max(n, big - 2)
        elif c.kind in ("valu", "vmem", "ds"):
            if p.dst & (c.src | c.dst): n = max(n, big)
            if c.kind == "valu" and p.C & c.dst: n = max(n, 7 if p.passes == 8 else 3)
    if p.kind == "salu" and "m0" in p.dst:
        if "m0" in c.src and c.kind in ("vmem", "valu", "ds"): n = max(n, 1)
    if p.kind == "vmem" and p.wide and p.data & c.dst:
        n = max(n, 2 if c.kind in ("valu", "mfma") else 1)
    return n

def _ab(c):
    ops = _split_ops(c.line.split(";")[0].strip().split(None, 1)[1])
    return _regs(ops[1]) | _regs(ops[2])

def fix_hazards(lines, verbose=False):
    W = 14
    out = []
    labels = {}
    def scan(hist, c):
        need = 0; dist = 0
        for p in reversed(hist):
            if p.ws == 0: continue
            r = _need(p, c)
            if r > dist: need = max(need, r - dist)
            dist += p.ws
            if dist >= W: break
        return need
    for l in lines:
        c = Ins(l)
        if c.label: labels[l.split(":")[0].strip()] = len(out)
        if c.ws:
            hist = out[-40:]
            for i in range(len(hist) - 1, -1, -1):
                if hist[i].op in ("s_branch", "s_endpgm", "s_setpc_b64"):
                    hist = hist[i+1:]; break
            n = scan(hist, c)
            while n > 0:
                k = min(n, 16)
                out.append(Ins(f"s_nop {k-1}")); n -= k
                if verbose: print("hazard nop", k, "before", l)
        out.append(c)
    res = []
    for idx, c in enumerate(out):
        if c.op.startswith(("s_cbranch", "s_branch")):
            tgt = c.line.split(";")[0].split()[-1]
            lab = [i for i, o in enumerate(out) if o.label and o.line.split(":")[0].strip() == tgt]
            if lab:
                hist = [o for o in out[max(0, idx-40):idx+1]]
                worst = 0; h = list(hist); d = 0
                for o in out[lab[0]:lab[0]+40]:
                    if o.ws == 0: continue
                    need = 0; dist = d
                    for p in reversed(hist):
                        if p.ws == 0: continue
                        r = _need(p, o)
                        if r > dist: need = max(need, r - dist)
                        dist += p.ws
                        if dist >= W: break
                    worst = max(worst, need)
                    d += o.ws
                    if d >= W or o.op in ("s_branch", "s_endpgm", "s_setpc_b64"): break
                if worst:
                    if verbose: print("branch hazard nop", worst, "before", c.line)
                    res.append(Ins(f"s_nop {worst-1}"))
        res.append(c)
    return [o.line for o in res]
```

```python
import sys, math
from asmlib import *

NAME = "gated_mix__linear_attn_block__ssm_conv_s4d__prompt"
OUT = f"cdna_kernels/{NAME}.s"

WS_PQ  = 0x0000000
WS_OF  = 0x0400000
WS_KVP = 0x0800000
WS_ZP  = 0x0A00000
WS_G   = 0x0A10000
WS_XT  = 0x0C00000
WS_KR  = 0x1000000
KR_ROW = 4160
WS_BT  = 0x2000000
WS_SIZE = 0x10000000
LOG2E = "0x3fb8aa3b"
EPS = "0x358637bd"

KA_X, KA_WQKV, KA_WO, KA_U, KA_LAR, KA_AI, KA_CR, KA_CI, KA_LDT, KA_DSK, KA_GW, KA_OUT, KA_DBG, KA_WS = [8*i for i in range(14)]

CFG = dict(PD=4, SEG=100, prio=True)

def gen_k1(cfg):
    name = "k1_kernel"
    a = Asm()
    kernel_head(a, name)
    NST = 3; STG = 40960
    LDSB = NST*STG
    X, W, WS = 8, 12, 16
    sM0B = 25; sKA, sKB = 26, 27; sRd, sWr = 28, 29; sT = 30; sW = 31; sTmp = 32
    sM, sN = 35, 36
    a(f"""
    s_cmp_ge_u32 s2, 256
    s_cbranch_scc1 L_k1_end
    s_load_dwordx4 s[4:7], s[0:1], {KA_X}
    s_load_dwordx2 s[20:21], s[0:1], {KA_WS}
    v_lshrrev_b32 v1, 6, v0
    v_and_b32 v0, 63, v0
    v_readfirstlane_b32 s{sW}, v1
    s_and_b32 s33, s2, 7
    s_lshr_b32 s34, s2, 3
    s_and_b32 s{sM}, s33, 1
    s_lshl_b32 s{sM}, s{sM}, 3
    s_and_b32 s{sN}, s34, 7
    s_add_u32 s{sM}, s{sM}, s{sN}
    s_lshr_b32 s{sN}, s33, 1
    s_lshl_b32 s{sN}, s{sN}, 2
    s_lshr_b32 s37, s34, 3
    s_add_u32 s{sN}, s{sN}, s37
    s_waitcnt lgkmcnt(0)
    """)
    srd(a, X, 4, 2048*1024*2)
    srd(a, W, 6, 1024*3072*2)
    srd(a, WS, 20, WS_SIZE)
    a(f"s_cmp_ge_u32 s{sW}, 4\ns_cbranch_scc1 L_k1_b")
    R = Regs(1, 256)
    L = 0
    ACC = R.alloc("acc", 96, 4)
    F0 = R.alloc("f0", 20, 4); F1 = R.alloc("f1", 20, 4)
    vDA = R.alloc("da", 4); vDB = R.alloc("db", 2)
    vRAb = R.alloc("rab", 4); vRBb = R.alloc("rbb", 1)
    vRA = R.alloc("ra", 4); vRB = R.alloc("rb", 1)
    vT = R.alloc("t", 8, 2)
    if cfg["prio"]: a("s_setprio 2")
    a(f"""
    s_lshl_b32 s37, s{sM}, 7
    s_lshl_b32 s38, s{sW}, 5
    s_add_u32 s37, s37, s38
    v_lshrrev_b32 v{vT+2}, 3, v{L}
    v_add_u32 v{vT+2}, s37, v{vT+2}
    v_lshlrev_b32 v{vT+2}, 11, v{vT+2}
    v_and_b32 v{vT+3}, 7, v{L}
    v_lshrrev_b32 v{vT+4}, 4, v{L}
    v_xor_b32 v{vT+5}, v{vT+3}, v{vT+4}
    v_xor_b32 v{vT+6}, 4, v{vT+5}
    v_lshl_add_u32 v{vT+5}, v{vT+5}, 4, v{vT+2}
    v_lshl_add_u32 v{vT+6}, v{vT+6}, 4, v{vT+2}
    """)
    for i in range(4):
        a(f"v_add_u32 v{vDA+i}, {i*8*2048 - i*1024}, v{vT+5+(i&1)}")
    a(f"""
    s_lshl_b32 s38, s{sW}, 4
    v_lshrrev_b32 v{vT+2}, 3, v{L}
    v_add_u32 v{vT+2}, s38, v{vT+2}
    v_mul_u32_u24 v{vT+2}, 6144, v{vT+2}
    v_and_b32 v{vT+4}, 1, v{vT+4}
    v_lshlrev_b32 v{vT+4}, 2, v{vT+4}
    v_xor_b32 v{vT+5}, v{vT+3}, v{vT+4}
    v_lshl_add_u32 v{vT+5}, v{vT+5}, 4, v{vT+2}
    s_lshl_b32 s38, s{sN}, 7
    v_add_u32 v{vDB}, s38, v{vT+5}
    v_add_u32 v{vDB+1}, {8*6144-1024}, v{vDB}
    s_lshl_b32 s39, s{sW}, 12
    s_lshl_b32 s40, s{sW}, 11
    s_add_u32 s40, s40, 16384
    s_mov_b32 s{sKA}, 0
    s_mov_b32 s{sKB}, 0
    s_mov_b32 s{sWr}, 0
    """)
    def dma_list():
        g = []
        for i in range(4):
            pre = f"s_add_u32 m0, s{sWr}, s39\n" if i == 0 else ""
            g.append(pre + f"buffer_load_dwordx4 v{vDA+i}, s[{X}:{X+3}], s{sKA} offen offset:{i*1024} lds")
        for seg in range(3):
            for jj in range(2):
                pre = ""
                if jj == 0:
                    if seg == 0:
                        pre = f"s_add_u32 s{sM0B}, s{sWr}, s40\ns_mov_b32 m0, s{sM0B}\ns_mov_b32 s{sTmp}, s{sKB}\n"
                    else:
                        pre = f"s_add_u32 m0, s{sM0B}, {seg*8192}\ns_add_u32 s{sTmp}, s{sKB}, {seg*2048}\n"
                g.append(pre + f"buffer_load_dwordx4 v{vDB+jj}, s[{W}:{W+3}], s{sTmp} offen offset:{jj*1024} lds")
        return g
    def dma_advance():
        return f"""
        s_add_u32 s{sKA}, s{sKA}, 128
        s_add_u32 s{sKB}, s{sKB}, {64*6144}
        s_add_u32 s{sWr}, s{sWr}, {STG}
        s_cmp_eq_u32 s{sWr}, {STG*NST}
        s_cselect_b32 s{sWr}, 0, s{sWr}
        """
    for st in range(NST-1):
        for g in dma_list(): a(g)
        a(dma_advance())
    a(f"""
    s_and_b32 s38, s{sW}, 1
    s_lshl_b32 s38, s38, 13
    v_and_b32 v{vT+2}, 31, v{L}
    v_lshrrev_b32 v{vT+3}, 5, v{L}
    v_bfe_u32 v{vT+4}, v{L}, 1, 3
    v_xor_b32 v{vT+4}, v{vT+4}, v{vT+3}
    v_lshlrev_b32 v{vT+4}, 4, v{vT+4}
    v_lshl_add_u32 v{vT+4}, v{vT+2}, 7, v{vT+4}
    v_add_u32 v{vRAb}, s38, v{vT+4}
    """)
    for kk in range(1, 4):
        a(f"v_xor_b32 v{vRAb+kk}, {32*kk}, v{vRAb}")
    a(f"""
    s_lshr_b32 s38, s{sW}, 1
    s_lshl_b32 s38, s38, 2
    v_bfe_u32 v{vT+2}, v{L}, 2, 2
    v_lshl_add_u32 v{vT+5}, v{vT+3}, 3, v{vT+2}
    v_bfe_u32 v{vT+4}, v{L}, 4, 1
    v_lshlrev_b32 v{vT+4}, 1, v{vT+4}
    v_bfe_u32 v{vT+6}, v{L}, 1, 1
    v_add3_u32 v{vT+4}, v{vT+4}, v{vT+6}, s38
    v_bfe_u32 v{vT+6}, v{L}, 3, 1
    v_lshlrev_b32 v{vT+6}, 2, v{vT+6}
    v_xor_b32 v{vT+4}, v{vT+4}, v{vT+6}
    v_lshlrev_b32 v{vT+4}, 4, v{vT+4}
    v_lshl_add_u32 v{vT+4}, v{vT+5}, 7, v{vT+4}
    v_and_b32 v{vT+6}, 1, v{L}
    v_lshl_add_u32 v{vT+4}, v{vT+6}, 3, v{vT+4}
    v_add_u32 v{vRBb}, 16384, v{vT+4}
    """)
    for r in range(96): a(f"v_mov_b32 v{ACC+r}, {EPS if r < 64 else 0}")
    for r in range(20): a(f"v_mov_b32 v{F1+r}, 0")
    a(f"s_mov_b32 s{sRd}, 0\ns_mov_b32 s{sT}, 0")
    def reads_list(F, kk):
        g = []
        for t in range(2):
            g.append(f"ds_read_b128 {vr(F+4*t,4)}, v{vRA+kk} offset:{t*4096}")
        for seg in range(3):
            for hf in range(2):
                g.append(f"ds_read_b64_tr_b16 {vr(F+8+4*seg+2*hf,2)}, v{vRB} offset:{seg*8192+kk*2048+hf*512}")
        return g
    def mfma_list(F):
        g = []
        for t in range(2):
            for seg in range(3):
                acc = vr(ACC + 16*(seg*2+t), 16)
                xa = vr(F+4*t, 4); wb = vr(F+8+4*seg, 4)
                if seg == 0: g.append(f"v_mfma_f32_32x32x16_bf16 {acc}, {wb}, {xa}, {acc}")
                else: g.append(f"v_mfma_f32_32x32x16_bf16 {acc}, {xa}, {wb}, {acc}")
        return g
    def body(dma, vm):
        for kk in range(4): a(f"v_add_u32 v{vRA+kk}, s{sRd}, v{vRAb+kk}")
        a(f"v_add_u32 v{vRB}, s{sRd}, v{vRBb}")
        a(f"s_waitcnt vmcnt({vm}) lgkmcnt(0)\ns_barrier")
        dl = dma_list() if dma else []
        sets = [F0, F1]
        for ph in range(4):
            rl = reads_list(sets[ph & 1], ph)
            ml = mfma_list(sets[(ph+1) & 1])
            if ph > 0: a("s_waitcnt lgkmcnt(0)")
            for i in range(6):
                a(ml[i])
                for _ in range((3,3,2,0,0,0)[i]): a(rl.pop(0))
                if dl and (i in (2, 3, 4) if ph < 3 else i == 2):
                    a(dl.pop(0))
                if ph == 3 and i == 3 and dma: a(dma_advance())
                if ph == 3 and i == 4:
                    a(f"""
                    s_add_u32 s{sRd}, s{sRd}, {STG}
                    s_cmp_eq_u32 s{sRd}, {STG*NST}
                    s_cselect_b32 s{sRd}, 0, s{sRd}
                    s_add_u32 s{sT}, s{sT}, 1
                    s_cmp_lt_u32 s{sT}, {16-(NST-1)}
                    """)
        assert not dl
    a("L_k1_loop:")
    body(True, 10)
    a("s_cbranch_scc1 L_k1_loop")
    body(False, 10)
    body(False, 0)
    a("s_waitcnt lgkmcnt(0)")
    for m in mfma_list(F1): a(m)
    PK = F0
    PV = R.alloc("pv", 16, 4)
    PQ = R.alloc("pq", 16, 4)
    ONES = R.alloc("ones", 4, 4)
    TE = R.alloc("te", 8, 2)
    a(f"s_mov_b32 s42, {LOG2E}\ns_mov_b32 s43, {LOG2E}\ns_mov_b32 s44, {EPS}")
    for i in range(4): a(f"v_mov_b32 v{ONES+i}, 0x3f803f80")
    a(f"""
    s_lshl_b32 s37, s{sM}, 2
    s_and_b32 s38, s{sW}, 1
    s_lshl_b32 s38, s38, 1
    s_add_u32 s37, s37, s38
    s_lshl_b32 s37, s37, 5
    s_lshl_b32 s38, s{sN}, 1
    s_lshr_b32 s41, s{sW}, 1
    s_add_u32 s41, s41, s38          ; head
    s_add_u32 s37, s37, s41
    s_lshl_b32 s37, s37, 11          ; (rt*32+head)*2048
    s_add_u32 s38, s37, {32*2048}
    v_lshlrev_b32 v{vT}, 4, v{L}
    """)
    def phi_pack(src, dst, n):
        for p in range(0, n, 4):
            for q in range(2):
                s = src + p + 2*q; t = TE + 2*q + (4 if (p//4) & 1 else 0)
                a(f"v_pk_mul_f32 {vr(t,2)}, {vr(s,2)}, s[42:43]")
            for q in range(2):
                s = src + p + 2*q; t = TE + 2*q + (4 if (p//4) & 1 else 0)
                a(f"v_exp_f32 v{t}, v{t} clamp\nv_exp_f32 v{t+1}, v{t+1} clamp")
                a(f"v_max_f32 v{s}, s44, v{s}\nv_max_f32 v{s+1}, s44, v{s+1}")
            for q in range(2):
                s = src + p + 2*q; t = TE + 2*q + (4 if (p//4) & 1 else 0)
                a(f"v_pk_add_f32 {vr(s,2)}, {vr(s,2)}, {vr(t,2)}")
            for q in range(2):
                s = src + p + 2*q
                a(f"v_cvt_pk_bf16_f32 v{dst+(p+2*q)//2}, v{s}, v{s+1}")
    KV = ACC + 64
    for i in range(16):
        a(f"v_cvt_pk_bf16_f32 v{PV+i}, v{ACC+64+2*i}, v{ACC+64+2*i+1}")
    phi_pack(ACC+32, PK, 32)
    for i in range(4):
        c = "0" if i == 0 else vr(KV,16)
        a(f"v_mfma_f32_32x32x16_bf16 {vr(KV,16)}, {vr(PK+4*i,4)}, {vr(PV+4*i,4)}, {c}")
    for i in range(4):
        c = "0" if i == 0 else vr(KV+16,16)
        a(f"v_mfma_f32_32x32x16_bf16 {vr(KV+16,16)}, {vr(PK+4*i,4)}, {vr(ONES,4)}, {c}")
    phi_pack(ACC, PQ, 32)
    for t in range(2):
        for f in range(2):
            a(f"buffer_store_dwordx4 {vr(PQ+8*t+4*f,4)}, v{vT}, s[{WS}:{WS+3}], s{37+t} offen offset:{f*1024}")
    XB = 2*STG
    a(f"""
    s_lshr_b32 s38, s{sW}, 1
    s_lshl_b32 s38, s38, 13
    s_add_u32 s38, s38, {XB}
    v_add_u32 v{vT+1}, s38, v{vT}
    s_and_b32 s38, s{sW}, 1
    s_cmp_eq_u32 s38, 0
    s_cbranch_scc1 L_k1_red0
    """)
    for q in range(8):
        a(f"ds_write_b128 v{vT+1}, {vr(KV+4*q,4)} offset:{q*1024}")
    a("s_waitcnt lgkmcnt(0)\ns_barrier\ns_endpgm")
    a("L_k1_red0:")
    a("s_barrier")
    for q in range(8):
        a(f"ds_read_b128 {vr(ACC+4*q,4)}, v{vT+1} offset:{q*1024}")
    a(f"""
    s_lshl_b32 s37, s41, 4
    s_add_u32 s37, s37, s{sM}        ; head*16+m
    s_lshl_b32 s38, s37, 12
    s_add_u32 s38, s38, {WS_KVP}
    s_lshl_b32 s37, s37, 7
    s_add_u32 s37, s37, {WS_ZP}
    v_lshrrev_b32 v{vT+2}, 5, v{L}
    v_lshlrev_b32 v{vT+2}, 6, v{vT+2}
    """)
    for q in range(8):
        a(f"s_waitcnt lgkmcnt({7-q})")
        a(f"v_pk_add_f32 {vr(KV+4*q,2)}, {vr(KV+4*q,2)}, {vr(ACC+4*q,2)}")
        a(f"v_pk_add_f32 {vr(KV+4*q+2,2)}, {vr(KV+4*q+2,2)}, {vr(ACC+4*q+2,2)}")
        if q < 4:
            a(f"buffer_store_dwordx4 {vr(KV+4*q,4)}, v{vT}, s[{WS}:{WS+3}], s38 offen offset:{q*1024}")
    a("s_mov_b32 exec_lo, 1\ns_mov_b32 exec_hi, 1")
    for q in range(4):
        a(f"buffer_store_dwordx4 {vr(KV+16+4*q,4)}, v{vT+2}, s[{WS}:{WS+3}], s37 offen offset:{q*16}")
    a("s_endpgm")
    hiG = R.hi
    a("L_k1_b:")
    b = Asm()
    hiB = gen_k1_b(b, cfg, X, W, WS, sW, sM, sN, LDSB)
    a.lines += b.lines
    a("L_k1_end:\ns_endpgm")
    lines = fix_hazards(a.lines)
    a.lines = lines
    return a.text(), kernel_desc(name, max(hiG, hiB)), f"; @launch kernel={name} grid=(256,1,1) block=(512,1,1) lds={LDSB+4*8192}"

def gen_k1_b(a, cfg, X, W, WS, sW, sM, sN, LDSB):
    R = Regs(1, 256)
    L = 0
    PD = cfg["PD"]
    sB = 37
    sD = 38
    sLB = 39
    PF = 40
    sPFo, sPFinc = 44, 45
    P0 = 48
    sF = 72; sInv = 73
    vPF = R.alloc("pf"); vPFd = R.alloc("pfd")
    a(f"""
    s_load_dwordx8 s[76:83], s[0:1], {KA_LAR}
    s_load_dwordx2 s[84:85], s[0:1], {KA_LDT}
    s_load_dwordx2 s[86:87], s[0:1], {KA_GW}
    s_sub_u32 s{sB}, s{sW}, 4
    s_lshl_b32 s{sD}, s2, 2
    s_add_u32 s{sD}, s{sD}, s{sB}
    s_lshl_b32 s{sLB}, s{sB}, 13
    s_add_u32 s{sLB}, s{sLB}, {LDSB}
    """)
    vT = R.alloc("t", 12, 2)
    a(f"""
    s_lshl_b32 s46, s{sM}, 7
    s_lshl_b32 s47, s{sB}, 5
    s_add_u32 s46, s46, s47
    s_lshl_b32 s46, s46, 11
    s_lshl_b32 s47, s{sN}, 7
    s_add_u32 s46, s46, s47
    v_lshrrev_b32 v{vT}, 3, v{L}
    v_lshlrev_b32 v{vT}, 11, v{vT}
    v_and_b32 v{vT+1}, 7, v{L}
    v_lshl_add_u32 v{vT}, v{vT+1}, 4, v{vT}
    s_mov_b32 m0, s{sLB}
    """)
    for i in range(4):
        a(f"buffer_load_dwordx4 v{vT}, s[{X}:{X+3}], s46 offen offset:{i*1024} lds")
        a(f"s_add_u32 s46, s46, {8*2048-1024}")
    a("s_waitcnt lgkmcnt(0)")
    for i, p in enumerate((76, 78, 80, 82)):
        srd(a, P0+4*i, p, 1024*128*2)
    srd(a, P0+16, 84, 2048)
    srd(a, P0+20, 86, 2048)
    PR = R.alloc("par", 16)
    vDT = R.alloc("dt")
    a(f"""
    v_and_b32 v{vT}, 31, v{L}
    v_lshlrev_b32 v{vT}, 1, v{vT}
    s_lshl_b32 s46, s{sD}, 8
    s_lshl_b32 s47, s{sD}, 1
    v_mov_b32 v{vT+1}, 0
    """)
    a(f"buffer_load_ushort v{vDT}, v{vT+1}, s[{P0+16}:{P0+19}], s47 offen")
    for arr in (2, 3, 0, 1):
        for c in range(4):
            a(f"buffer_load_ushort v{PR+4*arr+c}, v{vT}, s[{P0+4*arr}:{P0+4*arr+3}], s46 offen offset:{64*c}")
    GX = R.alloc("gx", 16, 4); GW = R.alloc("gw", 8, 4)
    a(f"""
    s_lshl_b32 s46, s{sM}, 7
    s_lshl_b32 s47, s{sN}, 3
    s_add_u32 s46, s46, s47
    s_lshl_b32 s47, s{sB}, 1
    s_add_u32 s88, s46, s47
    s_lshl_b32 s46, s88, 11
    v_lshlrev_b32 v{vT+2}, 5, v{L}
    """)
    for r in range(2):
        for h in range(2):
            a(f"buffer_load_dwordx4 {vr(GX+8*r+4*h,4)}, v{vT+2}, s[{X}:{X+3}], s46 offen offset:{2048*r+16*h}")
    for h in range(2):
        a(f"buffer_load_dwordx4 {vr(GW+4*h,4)}, v{vT+2}, s[{P0+20}:{P0+23}], 0 offen offset:{16*h}")
    NOWN = 4 + 17 + 6
    a(f"""
    s_lshr_b32 s46, s2, 3
    s_cmp_eq_u32 s{sB}, 0
    s_cbranch_scc0 L_k1_pfw
    s_mov_b32 s{PF}, s{X}
    s_mov_b32 s{PF+1}, s{X+1}
    s_mov_b32 s{PF+2}, {2048*1024*2}
    s_and_b32 s47, s2, 1
    s_lshl_b32 s47, s47, 10
    s_lshl_b32 s46, s46, 5
    s_add_u32 s46, s46, s47
    v_add_u32 v{vPF}, s46, v{L}
    v_lshlrev_b32 v{vPF}, 11, v{vPF}
    v_cmp_gt_u32 vcc, 32, v{L}
    s_mov_b32 s{sPFinc}, 128
    s_branch L_k1_pfj
    L_k1_pfw:
    s_mov_b32 s{PF}, s{W}
    s_mov_b32 s{PF+1}, s{W+1}
    s_cmp_eq_u32 s{sB}, 1
    s_cselect_b32 s{PF+2}, {1024*3072*2}, 0
    s_mul_i32 s46, s46, {2*6144}
    s_bfe_u32 s47, s2, 0x20001
    s_lshl_b32 s47, s47, 9
    s_add_u32 s46, s46, s47
    v_lshrrev_b32 v{vT+3}, 2, v{L}
    v_lshlrev_b32 v{vT+3}, 11, v{vT+3}
    v_and_b32 v{vT+4}, 3, v{L}
    v_lshl_add_u32 v{vT+3}, v{vT+4}, 7, v{vT+3}
    v_add_u32 v{vPF}, s46, v{vT+3}
    v_cmp_gt_u32 vcc, 24, v{L}
    s_mov_b32 s{sPFinc}, {64*6144}
    L_k1_pfj:
    s_mov_b32 s{PF+3}, 0x00020000
    v_mov_b32 v{vT+3}, 0x7ffffff0
    v_cndmask_b32 v{vPF}, v{vT+3}, v{vPF}, vcc
    s_lshl_b32 s{sPFo}, s{sPFinc}, 1
    """)
    def pf():
        return f"buffer_load_dword v{vPFd}, v{vPF}, s[{PF}:{PF+3}], s{sPFo} offen\ns_add_u32 s{sPFo}, s{sPFo}, s{sPFinc}"
    npf0 = PD - 2 + 0
    for i in range(npf0): a(pf())
    state = dict(pf=npf0)
    body = Asm()
    S = lambda: body("@S")
    c = body
    c("@WAITOWN")
    vA = R.alloc("tra"); TR = R.alloc("tr", 16, 4)
    c(f"""
    v_lshrrev_b32 v{vT}, 4, v{L}
    v_bfe_u32 v{vT+1}, v{L}, 2, 2
    v_lshl_add_u32 v{vT+1}, v{vT}, 3, v{vT+1}
    v_lshlrev_b32 v{vT+1}, 7, v{vT+1}
    v_and_b32 v{vT+2}, 3, v{L}
    v_lshl_add_u32 v{vT+1}, v{vT+2}, 3, v{vT+1}
    v_add_u32 v{vA}, s{sLB}, v{vT+1}
    """)
    for cb in range(4):
        for h in range(2):
            c(f"ds_read_b64_tr_b16 {vr(TR+4*cb+2*h,2)}, v{vA} offset:{cb*32+h*512}")
    c(f"""
    v_and_b32 v{vT+1}, 15, v{L}
    v_lshlrev_b32 v{vT+1}, 12, v{vT+1}
    v_lshl_add_u32 v{vT+1}, v{vT}, 4, v{vT+1}
    s_lshl_b32 s46, s{sN}, 18
    s_lshl_b32 s47, s{sM}, 8
    s_add_u32 s46, s46, s47
    s_lshl_b32 s47, s{sB}, 6
    s_add_u32 s46, s46, s47
    s_add_u32 s46, s46, {WS_XT}
    """)
    for cb in range(4):
        c(f"s_waitcnt lgkmcnt({6-2*cb})")
        c(f"buffer_store_dwordx4 {vr(TR+4*cb,4)}, v{vT+1}, s[{WS}:{WS+3}], s46 offen")
        c(f"s_add_u32 s46, s46, {16*4096}")
    S()
    GA = R.alloc("ga", 2, 2)
    c(f"v_mov_b32 v{GA}, 0\nv_mov_b32 v{GA+1}, 0")
    for i in range(8):
        wl, wh = vT, vT+1
        c(f"v_lshlrev_b32 v{wl}, 16, v{GW+i}\nv_and_b32 v{wh}, 0xffff0000, v{GW+i}")
        for r in range(2):
            xl, xh = vT+2+2*r, vT+3+2*r
            c(f"v_lshlrev_b32 v{xl}, 16, v{GX+8*r+i}\nv_and_b32 v{xh}, 0xffff0000, v{GX+8*r+i}")
            c(f"v_pk_mul_f32 {vr(xl,2)}, {vr(xl,2)}, {vr(wl,2)}")
            c(f"v_cvt_pk_bf16_f32 v{xl}, v{xl}, v{xh}")
            c(f"v_and_b32 v{xh}, 0xffff0000, v{xl}\nv_lshlrev_b32 v{xl}, 16, v{xl}")
            c(f"v_add_f32 v{GA+r}, v{GA+r}, v{xl}\nv_add_f32 v{GA+r}, v{GA+r}, v{xh}")
        if i == 3: S()
    for dp in ("quad_perm:[1,0,3,2]", "quad_perm:[2,3,0,1]", "row_half_mirror", "row_mirror"):
        for r in range(2):
            c(f"v_add_f32_dpp v{GA+r}, v{GA+r}, v{GA+r} {dp} row_mask:0xf bank_mask:0xf")
    for r in range(2):
        for k in range(4):
            c(f"v_readlane_b32 s{90+4*r+k}, v{GA+r}, {16*k}")
    c(f"""
    v_mov_b32 v{vT}, s90
    v_mov_b32 v{vT+1}, s94
    v_add_f32 v{vT}, s91, v{vT}
    v_add_f32 v{vT+1}, s95, v{vT+1}
    v_add_f32 v{vT}, s92, v{vT}
    v_add_f32 v{vT+1}, s96, v{vT+1}
    v_add_f32 v{vT}, s93, v{vT}
    v_add_f32 v{vT+1}, s97, v{vT+1}
    v_cvt_pk_bf16_f32 v{vT}, v{vT}, v{vT+1}
    v_and_b32 v{vT+1}, 0xffff0000, v{vT}
    v_lshlrev_b32 v{vT}, 16, v{vT}
    v_mul_f32 v{vT}, 0xbfb8aa3b, v{vT}
    v_mul_f32 v{vT+1}, 0xbfb8aa3b, v{vT+1}
    v_exp_f32 v{vT}, v{vT}
    v_exp_f32 v{vT+1}, v{vT+1}
    v_add_f32 v{vT}, 1.0, v{vT}
    v_add_f32 v{vT+1}, 1.0, v{vT+1}
    v_rcp_f32 v{vT}, v{vT}
    v_rcp_f32 v{vT+1}, v{vT+1}
    v_cvt_pk_bf16_f32 v{vT}, v{vT}, v{vT+1}
    v_and_b32 v{vT+1}, 0xffff0000, v{vT}
    v_lshlrev_b32 v{vT}, 16, v{vT}
    v_mov_b32 v{vT+2}, 0
    s_lshl_b32 s46, s88, 2
    s_add_u32 s46, s46, {WS_G}
    s_mov_b64 exec, 1
    buffer_store_dwordx2 {vr(vT,2)}, v{vT+2}, s[{WS}:{WS+3}], s46 offen
    s_mov_b64 exec, -1
    """)
    S()
    c(f"v_lshlrev_b32 v{vDT}, 16, v{vDT}")
    for i in range(16): c(f"v_lshlrev_b32 v{PR+i}, 16, v{PR+i}")
    vM = vT
    c(f"v_max_f32 v{vM}, |v{PR+8}|, |v{PR+9}|")
    for i in range(10, 16, 2):
        c(f"v_max3_f32 v{vM}, |v{PR+i}|, |v{PR+i+1}|, v{vM}")
    for dp in ("quad_perm:[1,0,3,2]", "quad_perm:[2,3,0,1]", "row_half_mirror", "row_mirror"):
        c(f"v_max_f32_dpp v{vM}, v{vM}, v{vM} {dp} row_mask:0xf bank_mask:0xf")
    c(f"""
    v_readlane_b32 s46, v{vM}, 0
    v_readlane_b32 s47, v{vM}, 16
    v_mul_f32 v{vDT}, {LOG2E}, v{vDT}
    v_exp_f32 v{vDT}, v{vDT}
    s_max_u32 s46, s46, s47
    s_lshr_b32 s46, s46, 23
    s_min_u32 s46, s46, 252
    s_sub_u32 s{sInv}, 253, s46
    s_lshl_b32 s{sInv}, s{sInv}, 23
    s_add_u32 s{sF}, s46, 2
    s_lshl_b32 s{sF}, s{sF}, 23              ; 2*S
    v_cvt_pk_bf16_f32 v{vDT}, v{vDT}, v{vDT}
    v_lshlrev_b32 v{vDT}, 16, v{vDT}
    """)
    vH = R.alloc("half"); pB = R.alloc("pB"); pA = R.alloc("pA"); pC = R.alloc("pC")
    AW = R.alloc("aw", 8); AR = R.alloc("ar", 4)
    c(f"""
    v_lshrrev_b32 v{vH}, 5, v{L}
    v_cmp_eq_u32 s[98:99], 1, v{vH}
    v_cvt_f32_u32 v{vT+1}, v{vH}
    v_mov_b32 v{vT+2}, 0x437f0000            ; 255
    v_fma_f32 v{pB}, v{vT+1}, v{vT+2}, 1.0   ; 1 | 256
    v_mul_f32 v{pA}, 0x43000000, v{vT+1}     ; 0 | 128
    v_mov_b32 v{vT+2}, 0x43810000            ; 258
    v_fma_f32 v{pC}, v{vT+1}, v{vT+2}, v{vT+2}  ; 258 | 516
    v_bfe_u32 v{vT+1}, v{L}, 2, 3            ; nu>>2
    v_and_b32 v{vT+2}, 3, v{L}
    v_lshlrev_b32 v{vT+2}, 2, v{vT+2}
    v_lshl_add_u32 v{vT+2}, v{vH}, 11, v{vT+2}
    v_add_u32 v{vT+2}, s{sLB}, v{vT+2}
    v_lshl_add_u32 v{AW}, v{vT+1}, 4, v{vT+2}
    """)
    for f in range(1, 8): c(f"v_xor_b32 v{AW+f}, {16*f}, v{AW}")
    c(f"""
    v_and_b32 v{vT+1}, 31, v{L}
    v_bfe_u32 v{vT+2}, v{L}, 1, 3
    v_xor_b32 v{vT+2}, v{vT+2}, v{vH}
    v_lshlrev_b32 v{vT+2}, 4, v{vT+2}
    v_lshl_add_u32 v{vT+2}, v{vT+1}, 7, v{vT+2}
    v_add_u32 v{AR}, s{sLB}, v{vT+2}
    """)
    for kk in range(1, 4): c(f"v_xor_b32 v{AR+kk}, {32*kk}, v{AR}")
    S()
    D = R.alloc("D", 16, 4)
    FR = R.alloc("fr", 32, 4)
    al = R.alloc("al"); be = R.alloc("be")
    eA = R.alloc("eA", 2, 2); eB = R.alloc("eB", 2, 2); eC = R.alloc("eC", 2, 2)
    zA = R.alloc("zA", 2, 2); zB = R.alloc("zB", 2, 2); zC = R.alloc("zC", 2, 2)
    tA = R.alloc("tA", 2, 2); tB = R.alloc("tB", 2, 2)
    wA = R.alloc("wA", 2); wB = R.alloc("wB", 2)
    def direct(dst, p, t0, t1):
        return [f"v_mul_f32 v{t0}, {p}, v{al}", f"v_mul_f32 v{t1}, {p}, v{be}",
                f"v_exp_f32 v{t0}, v{t0}", f"v_fract_f32 v{t1}, v{t1}",
                f"v_cos_f32 v{dst}, v{t1}", f"v_sin_f32 v{dst+1}, v{t1}",
                f"v_mul_f32 v{dst}, v{dst}, v{t0}", f"v_mul_f32 v{dst+1}, v{dst+1}, v{t0}"]
    def cmul(dst, z, e, t, conj):
        ng = "neg_hi:[1,0,0]" if conj else "neg_lo:[1,0,0]"
        return [f"v_pk_mul_f32 {vr(t,2)}, {vr(z,2)}, {vr(e,2)} op_sel_hi:[1,0]",
                f"v_pk_fma_f32 {vr(dst,2)}, {vr(z,2)}, {vr(e,2)}, {vr(t,2)} op_sel:[1,1,0] op_sel_hi:[0,1,1] {ng}"]
    def wr(z, w, row, tbl):
        return [f"v_cvt_pk_f16_f32 v{w}, v{z}, v{z+1}",
                f"ds_write_b32 v{AW+((row>>1)&7)}, v{w} offset:{tbl*4096+row*128}"]
    def interleave(*lists):
        out = []; lists = [list(l) for l in lists]
        while any(lists):
            for l in lists:
                if l: out.append(l.pop(0))
        return out
    for ch in range(4):
        lar, ai, cr, ci = PR+ch, PR+4+ch, PR+8+ch, PR+12+ch
        c(f"""
        v_mul_f32 v{al}, {LOG2E}, v{lar}
        v_exp_f32 v{al}, v{al}
        v_mul_f32 v{be}, v{ai}, v{vDT}
        v_mul_f32 v{zB}, s{sInv}, v{cr}
        v_cvt_pk_bf16_f32 v{al}, v{al}, v{al}
        v_lshlrev_b32 v{al}, 16, v{al}
        v_mul_f32 v{be}, 0.15915494, v{be}
        v_mul_f32 v{al}, v{al}, v{vDT}
        v_mul_f32 v{zB+1}, -s{sInv}, v{ci}
        v_mul_f32 v{al}, 0xbfb8aa3b, v{al}
        """)
        for l in interleave(direct(eA, "0x41000000", vT, vT+1), direct(zA, f"v{pA}", vT+2, vT+3),
                            direct(eB, f"v{pB}", vT+4, vT+5), direct(eC, f"v{pC}", vT+6, vT+7)): c(l)
        S()
        for l in cmul(zC, zB, eC, tB, True): c(l)
        for l in cmul(eC, eB, eB, tA, False): c(l)
        c(f"v_cndmask_b32 v{eC}, v{eC}, v{eB}, s[98:99]\nv_cndmask_b32 v{eC+1}, v{eC+1}, v{eB+1}, s[98:99]")
        chA = []
        for j in range(16):
            chA += wr(zA, wA + (j & 1), j, 0)
            if j < 15: chA += cmul(zA, zA, eA, tA, False)
        chB = []
        for j in range(9):
            chB += wr(zB, wB + (j & 1), j, 1)
            if j < 8: chB += cmul(zB, zB, eB, tB, True)
        for j in range(3):
            chB += wr(zC, wB + ((j+1) & 1), 9 + j, 1)
            if j < 2: chB += cmul(zC, zC, eC, tB, True)
        il = interleave(chA, chB)
        for i, l in enumerate(il):
            c(l)
            if i % 16 == 15: S()
        for kk in range(4):
            c(f"ds_read_b128 {vr(FR+8*kk,4)}, v{AR+kk} offset:4096")
            c(f"ds_read_b128 {vr(FR+8*kk+4,4)}, v{AR+kk}")
        for kk in range(4):
            c(f"s_waitcnt lgkmcnt({6-2*kk})")
            cc = "0" if (ch == 0 and kk == 0) else vr(D,16)
            c(f"v_mfma_f32_32x32x16_f16 {vr(D,16)}, {vr(FR+8*kk,4)}, {vr(FR+8*kk+4,4)}, {cc}")
        S()
    vF = vT+8
    c(f"v_mul_f32 v{vF}, s{sF}, v{vDT}")
    vTw = vT+9; vJ = vT+10; vH128 = vT+11
    c(f"""
    v_and_b32 v{vJ}, 31, v{L}
    v_lshlrev_b32 v{vJ}, 2, v{vJ}
    v_add_u32 v{vJ}, s{sLB}, v{vJ}
    v_lshl_add_u32 v{vTw}, v{vH}, 9, v{vJ}
    v_lshlrev_b32 v{vH128}, 7, v{vH}
    """)
    for r in range(15):
        c(f"v_mul_f32 v{D+r}, v{D+r}, v{vF}")
        c(f"ds_write_b32 v{vTw}, v{D+r} offset:{((r&3)+8*(r>>2))*128}")
    S()
    K = FR
    rows1 = [17,17,9,10,10,10,11,17,17]
    vJ4 = vT+7
    c(f"v_lshl_add_u32 v{vJ4}, v{vH}, 2, v{vJ}")
    for e in range(9):
        base = vJ4 if e >= 7 else vJ
        c(f"v_mad_u32_u24 v{vT+(e&3)}, v{vH128}, {rows1[e]-e}, v{base}")
        c(f"ds_read_b32 v{K+e}, v{vT+(e&3)} offset:{e*128}")
    vLl = vT+6
    c(f"v_lshlrev_b32 v{vLl}, 2, v{L}\nv_add_u32 v{vLl}, s{sLB}, v{vLl}")
    c(f"""
    v_add_u32 v{vT}, {18*128}, v{vLl}
    v_add_u32 v{vT+1}, {20*128}, v{vLl}
    ds_read2_b32 {vr(K+10,2)}, v{vT} offset0:0 offset1:1
    ds_read_b32 v{K+12}, v{vLl} offset:{25*128}
    ds_read2_b32 {vr(K+14,2)}, v{vT+1} offset0:0 offset1:1
    ds_read2_b32 {vr(K+16,2)}, v{vT+1} offset0:64 offset1:65
    v_and_b32 v{vT+2}, 1, v{L}
    v_cmp_eq_u32 vcc, 1, v{vT+2}
    v_sub_u32 v{vT+3}, 255, v{L}
    v_lshlrev_b32 v{vT+3}, 4, v{vT+3}        ; 16*(255-l)
    s_mul_i32 s46, s{sD}, {2*KR_ROW}
    s_add_u32 s46, s46, {WS_KR - 3072}
    s_add_u32 s47, s46, {KR_ROW}
    s_waitcnt lgkmcnt(0)
    """)
    O = D
    def emit_chunk(k, ci):
        for d in range(4):
            c(f"v_cvt_pk_bf16_f32 v{O+8*(ci&1)+d}, v{k[7-2*d]}, v{k[6-2*d]}")
        for d in range(4):
            c(f"v_cvt_pk_bf16_f32 v{O+8*(ci&1)+4+d}, v{k[8-2*d]}, v{k[7-2*d]}")
        c(f"buffer_store_dwordx4 {vr(O+8*(ci&1),4)}, v{vT+3}, s[{WS}:{WS+3}], s46 offen offset:{3072-1024*ci}")
        c(f"buffer_store_dwordx4 {vr(O+8*(ci&1)+4,4)}, v{vT+3}, s[{WS}:{WS+3}], s47 offen offset:{3072-1024*ci}")
    c(f"v_cndmask_b32 v{K+18}, v{K+14}, v{K+15}, vcc\nv_cndmask_b32 v{K+19}, v{K+16}, v{K+17}, vcc")
    emit_chunk([K+e for e in range(9)], 0)
    A_, C_, B_ = K+10, K+11, K+12
    emit_chunk([A_,A_,A_,B_,B_,B_,C_,C_,C_], 1)
    S()
    for ci in (2, 3):
        A_, B_, M_ = K+14+2*(ci-2), K+15+2*(ci-2), K+18+(ci-2)
        emit_chunk([A_,A_,A_,A_,M_,B_,B_,B_,B_], ci)
    Z = K+20
    c(f"""
    v_mov_b32 v{Z+1}, 0
    v_mov_b32 v{Z+2}, 0
    v_mov_b32 v{Z+3}, 0
    v_cvt_pk_bf16_f32 v{Z}, v{K}, v{Z+1}
    v_cmp_eq_u32 vcc, 0, v{L}
    v_and_b32 v{vT}, 3, v{L}
    v_lshlrev_b32 v{vT}, 4, v{vT}
    v_cndmask_b32 v{Z}, v{Z+1}, v{Z}, vcc
    v_cmp_gt_u32 vcc, 4, v{L}
    v_add_u32 v{vT+1}, {KR_ROW}, v{vT}
    s_add_u32 s46, s46, {3072+4096}
    v_cndmask_b32 v{vT}, v{vT}, v{vT+1}, vcc
    s_mov_b64 exec, 0xff
    buffer_store_dwordx4 {vr(Z,4)}, v{vT}, s[{WS}:{WS+3}], s46 offen
    s_mov_b64 exec, -1
    """)
    SEG = cfg["SEG"]
    nb = 0; cnt = 0; npf = npf0
    def sync():
        nonlocal nb, npf
        a("s_barrier")
        if nb + PD < 16:
            a(pf()); npf += 1
        nb += 1
    for l in body.lines:
        if l == "@WAITOWN":
            a(f"s_waitcnt vmcnt({npf})")
        elif l == "@S":
            if cnt >= SEG and nb < 16:
                sync(); cnt = 0
        else:
            a(l); cnt += 1
    print("k1 B-wave: barriers inside code:", nb, "instrs:", len(body.lines))
    while nb + PD < 16:
        sync()
    a("s_endpgm")
    return R.hi

def gen_k2(cfg):
    name = "k2_kernel"
    a = Asm()
    kernel_head(a, name)
    WS = 8; DS = 12
    sW = 31
    CW = 4*KR_ROW + 512 + 4096
    LDSO = 4*CW
    L = 0
    a(f"""
    s_cmp_ge_u32 s2, 256
    s_cbranch_scc1 L_k2_end
    s_load_dwordx2 s[4:5], s[0:1], {KA_WS}
    s_load_dwordx2 s[6:7], s[0:1], {KA_DSK}
    v_lshrrev_b32 v1, 6, v0
    v_and_b32 v0, 63, v0
    v_readfirstlane_b32 s{sW}, v1
    s_waitcnt lgkmcnt(0)
    """)
    srd(a, WS, 4, WS_SIZE)
    srd(a, DS, 6, 2048)
    a(f"s_cmp_ge_u32 s{sW}, 4\ns_cbranch_scc1 L_k2_o")
    R = Regs(1, 256)
    ACC = R.alloc("acc", 32, 4)
    SA = [R.alloc("a0", 32, 4), R.alloc("a1", 32, 4)]
    SB = [R.alloc("b0", 32, 4), R.alloc("b1", 32, 4)]
    vT = R.alloc("t", 8, 2)
    aA = R.alloc("aA"); aB = R.alloc("aB"); vD = R.alloc("dsk", 2, 2); v16 = R.alloc("l16")
    sD = 32; sLB = 33
    a(f"""
    s_lshl_b32 s{sD}, s2, 2
    s_add_u32 s{sD}, s{sD}, s{sW}
    s_mul_i32 s{sLB}, s{sW}, {CW}
    v_lshlrev_b32 v{v16}, 4, v{L}
    s_lshl_b32 s34, s{sD}, 12
    s_add_u32 s34, s34, {WS_XT}
    s_add_u32 m0, s{sLB}, {4*KR_ROW+512}
    s_mul_i32 s35, s{sD}, {2*KR_ROW}
    s_add_u32 s35, s35, {WS_KR}
    """)
    for i in range(4):
        a(f"buffer_load_dwordx4 v{v16}, s[{WS}:{WS+3}], s34 offen offset:{i*1024} lds")
    for cp in range(4):
        src = (KR_ROW + 4 + 4*(cp >> 1)) if (cp & 1) else 4*(cp >> 1)
        a(f"s_add_u32 m0, s{sLB}, {cp*KR_ROW}\ns_add_u32 s36, s35, {src}")
        for i in range(4):
            a(f"buffer_load_dwordx4 v{v16}, s[{WS}:{WS+3}], s36 offen offset:{i*1024} lds")
    a(f"""
    s_lshl_b32 s36, s{sD}, 1
    v_mov_b32 v{vT}, 0
    v_mov_b32 v{vT+1}, 0
    buffer_load_ushort v{vD}, v{vT}, s[{DS}:{DS+3}], s36 offen
    v_lshlrev_b32 v{vT+2}, 3, v{L}
    v_add_u32 v{vT+2}, s{sLB}, v{vT+2}
    ds_write_b64 v{vT+2}, {vr(vT,2)} offset:{4*KR_ROW}
    v_lshrrev_b32 v{vT+3}, 2, v{L}
    v_mul_u32_u24 v{vT+3}, {KR_ROW}, v{vT+3}
    v_and_b32 v{vT+4}, 3, v{L}
    v_lshl_add_u32 v{vT+3}, v{vT+4}, 3, v{vT+3}
    v_add_u32 v{vT+3}, s{sLB}, v{vT+3}
    s_mov_b64 exec, 0xffff
    ds_write_b64 v{vT+3}, {vr(vT,2)} offset:4096
    s_mov_b64 exec, -1
    """)
    a(f"""
    v_and_b32 v{vT+2}, 3, v{L}
    v_xor_b32 v{vT+2}, 3, v{vT+2}
    v_mul_u32_u24 v{vT+2}, {KR_ROW}, v{vT+2}
    v_and_b32 v{vT+3}, 12, v{L}
    v_lshlrev_b32 v{vT+3}, 1, v{vT+3}
    v_sub_u32 v{vT+2}, v{vT+2}, v{vT+3}
    v_lshrrev_b32 v{vT+4}, 4, v{L}
    v_lshl_add_u32 v{vT+2}, v{vT+4}, 4, v{vT+2}
    s_add_u32 s36, s{sLB}, {2*2028-3584}
    v_add_u32 v{aA}, s36, v{vT+2}
    v_and_b32 v{vT+3}, 15, v{L}
    v_lshlrev_b32 v{vT+3}, 5, v{vT+3}
    v_lshl_add_u32 v{vT+5}, v{vT+4}, 4, v{vT+3}
    s_add_u32 s36, s{sLB}, {4*KR_ROW+512-32}
    v_add_u32 v{aB}, s36, v{vT+5}
    v_lshl_add_u32 v{vT+6}, v{vT+4}, 3, v{vT+3}
    s_waitcnt vmcnt(0) lgkmcnt(0)
    """)
    def reads(st):
        g = []
        for k in range(8):
            g.append(f"ds_read_b128 {vr(SB[st]+4*k,4)}, v{aB} offset:{512*k}")
            g.append(f"ds_read_b64 {vr(SA[st]+4*k,2)}, v{aA} offset:{(7-k)*512}")
            g.append(f"ds_read_b64 {vr(SA[st]+4*k+2,2)}, v{aA} offset:{(7-k)*512+8}")
        return g
    def mf(st, first):
        g = []
        seen = set()
        pairs = sorted([(t1, dl) for t1 in range(8) for dl in range(8) if t1+dl < 8], key=lambda p: (max(p), p))
        for t1, dl in pairs:
            nu = t1 + dl
            c = "0" if (first and nu not in seen) else vr(ACC+4*nu,4)
            seen.add(nu)
            g.append(f"v_mfma_f32_16x16x32_bf16 {vr(ACC+4*nu,4)}, {vr(SA[st]+4*t1,4)}, {vr(SB[st]+4*dl,4)}, {c}")
        return g
    for l in reads(0): a(l)
    for t0 in range(8):
        st = t0 & 1
        rl = []
        if t0 < 7:
            a(f"v_subrev_u32 v{aA}, 64, v{aA}\nv_subrev_u32 v{aB}, 64, v{aB}")
            rl = reads(st ^ 1)
        a("s_waitcnt lgkmcnt(0)")
        ml = mf(st, t0 == 0)
        for i, m in enumerate(ml):
            a(m)
            if rl: a(rl.pop(0))
        if t0 == 0: a("s_barrier")
    U = SA[0]
    a(f"s_add_u32 s36, s{sLB}, {4*KR_ROW+512}\nv_add_u32 v{vT+5}, s36, v{vT+6}")
    for nu in range(8):
        a(f"ds_read_b64 {vr(U+2*nu,2)}, v{vT+5} offset:{512*nu}")
    a(f"""
    v_lshlrev_b32 v{vD}, 16, v{vD}
    v_mov_b32 v{vD+1}, v{vD}
    s_lshl_b32 s34, s{sD}, 12
    s_add_u32 s34, s34, {WS_BT}
    """)
    E = SB[0]
    for nu in range(8):
        a(f"s_waitcnt lgkmcnt({7-nu})")
        e = E + 4*(nu & 3)
        for p in range(2):
            a(f"v_lshlrev_b32 v{e+2*p}, 16, v{U+2*nu+p}\nv_and_b32 v{e+2*p+1}, 0xffff0000, v{U+2*nu+p}")
        for p in range(2):
            a(f"v_pk_fma_f32 {vr(e+2*p,2)}, {vr(e+2*p,2)}, {vr(vD,2)}, {vr(ACC+4*nu+2*p,2)}")
        for p in range(2):
            a(f"v_cvt_pk_bf16_f32 v{U+2*nu+p}, v{e+2*p}, v{e+2*p+1}")
        a(f"buffer_store_dwordx2 {vr(U+2*nu,2)}, v{vT+6}, s[{WS}:{WS+3}], s34 offen offset:{512*nu}")
    a("s_endpgm")
    hiC = R.hi
    a("L_k2_o:")
    R = Regs(1, 256)
    P = R.alloc("p", 64, 4); Z = R.alloc("z", 64, 4)
    PQ = R.alloc("pq", 16, 4)
    vT = R.alloc("t", 8, 2); v16 = R.alloc("l16"); vZ = R.alloc("vz")
    KVF = R.alloc("kvf", 8, 4); ZF = R.alloc("zf", 8, 4)
    sB = 32; sH = 33; sC = 34
    OW = 4096 + 256
    a(f"""
    s_sub_u32 s{sB}, s{sW}, 4
    s_and_b32 s{sH}, s2, 31
    s_lshr_b32 s{sC}, s2, 5
    v_lshlrev_b32 v{v16}, 4, v{L}
    v_lshrrev_b32 v{vZ}, 5, v{L}
    v_lshlrev_b32 v{vZ}, 6, v{vZ}
    s_lshl_b32 s35, s{sH}, 4
    s_lshl_b32 s36, s{sB}, 2
    s_add_u32 s35, s35, s36
    s_lshl_b32 s36, s35, 12
    s_add_u32 s36, s36, {WS_KVP}
    s_lshl_b32 s37, s35, 7
    s_add_u32 s37, s37, {WS_ZP}
    """)
    for p in range(4):
        for q in range(4):
            a(f"buffer_load_dwordx4 {vr(P+16*p+4*q,4)}, v{v16}, s[{WS}:{WS+3}], s36 offen offset:{q*1024}")
        a("s_add_u32 s36, s36, 4096")
    for p in range(4):
        for q in range(4):
            a(f"buffer_load_dwordx4 {vr(Z+16*p+4*q,4)}, v{vZ}, s[{WS}:{WS+3}], s37 offen offset:{p*128+q*16}")
    a(f"""
    s_lshl_b32 s35, s{sC}, 3
    s_lshl_b32 s36, s{sB}, 1
    s_add_u32 s35, s35, s36
    s_lshl_b32 s35, s35, 5
    s_add_u32 s35, s35, s{sH}
    s_lshl_b32 s35, s35, 11
    s_add_u32 s36, s35, {32*2048}
    """)
    for t in range(2):
        for f in range(2):
            a(f"buffer_load_dwordx4 {vr(PQ+8*t+4*f,4)}, v{v16}, s[{WS}:{WS+3}], s{35+t} offen offset:{f*1024}")
    a("s_waitcnt vmcnt(20)")
    def sum4(B):
        for i in range(0, 16, 2):
            a(f"v_pk_add_f32 {vr(B+i,2)}, {vr(B+i,2)}, {vr(B+16+i,2)}")
            a(f"v_pk_add_f32 {vr(B+32+i,2)}, {vr(B+32+i,2)}, {vr(B+48+i,2)}")
        for i in range(0, 16, 2):
            a(f"v_pk_add_f32 {vr(B+i,2)}, {vr(B+i,2)}, {vr(B+32+i,2)}")
    sum4(P)
    a(f"""
    s_mul_i32 s38, s{sB}, {OW}
    s_add_u32 s38, s38, {LDSO}
    v_add_u32 v{vT}, s38, v{v16}
    v_add_u32 v{vT+1}, s38, v{vZ}
    """)
    for q in range(4):
        a(f"ds_write_b128 v{vT}, {vr(P+4*q,4)} offset:{q*1024}")
    a("s_waitcnt vmcnt(4)")
    sum4(Z)
    a("s_mov_b32 exec_lo, 1\ns_mov_b32 exec_hi, 1")
    for q in range(4):
        a(f"ds_write_b128 v{vT+1}, {vr(Z+4*q,4)} offset:{4096+q*16}")
    a("s_mov_b64 exec, -1")
    a(f"v_add_u32 v{vT}, {LDSO}, v{v16}\nv_add_u32 v{vT+1}, {LDSO}, v{vZ}")
    a("s_waitcnt lgkmcnt(0)\ns_barrier")
    for p in range(4):
        for q in range(4):
            a(f"ds_read_b128 {vr(P+16*p+4*q,4)}, v{vT} offset:{p*OW+q*1024}")
    a("s_waitcnt lgkmcnt(0)")
    for p in range(4):
        for q in range(4):
            a(f"ds_read_b128 {vr(Z+16*p+4*q,4)}, v{vT+1} offset:{p*OW+4096+q*16}")
    sum4(P)
    for i in range(8): a(f"v_cvt_pk_bf16_f32 v{KVF+i}, v{P+2*i}, v{P+2*i+1}")
    a("s_waitcnt lgkmcnt(0)")
    sum4(Z)
    for i in range(8): a(f"v_cvt_pk_bf16_f32 v{ZF+i}, v{Z+2*i}, v{Z+2*i+1}")
    a("s_waitcnt vmcnt(0)")
    NUM = [P+16, P+32]; DEN = [Z+16, Z+32]
    for t in range(2):
        for f in range(2):
            c = "0" if f == 0 else vr(DEN[t],16)
            a(f"v_mfma_f32_32x32x16_bf16 {vr(DEN[t],16)}, {vr(ZF+4*f,4)}, {vr(PQ+8*t+4*f,4)}, {c}")
        for f in range(2):
            c = "0" if f == 0 else vr(NUM[t],16)
            a(f"v_mfma_f32_32x32x16_bf16 {vr(NUM[t],16)}, {vr(KVF+4*f,4)}, {vr(PQ+8*t+4*f,4)}, {c}")
    a(f"s_add_u32 s35, s35, {WS_OF}\ns_add_u32 s36, s36, {WS_OF}")
    for t in range(2):
        r = vT + 2*t + 2
        a(f"v_add_f32 v{r}, {EPS}, v{DEN[t]}\nv_rcp_f32 v{r}, v{r}\nv_mov_b32 v{r+1}, v{r}")
        for i in range(8):
            a(f"v_pk_mul_f32 {vr(NUM[t]+2*i,2)}, {vr(NUM[t]+2*i,2)}, {vr(r,2)}")
        for i in range(8):
            a(f"v_cvt_pk_bf16_f32 v{PQ+8*t+i}, v{NUM[t]+2*i}, v{NUM[t]+2*i+1}")
        for f in range(2):
            a(f"buffer_store_dwordx4 {vr(PQ+8*t+4*f,4)}, v{v16}, s[{WS}:{WS+3}], s{35+t} offen offset:{f*1024}")
    a("L_k2_end:\ns_endpgm")
    a.lines = fix_hazards(a.lines)
    return a.text(), kernel_desc(name, max(hiC, R.hi)), f"; @launch kernel={name} grid=(256,1,1) block=(512,1,1) lds={LDSO+4*OW}"

def gen_k3(cfg):
    name = "k3_kernel"
    a = Asm()
    kernel_head(a, name)
    WS = 8; WO = 12; OUTS = 16
    sW = 31; sM = 35; sN = 36
    L = 0
    LBT = 131072
    R = Regs(1, 256)
    ACC = R.alloc("acc", 32, 4)
    NR = 3
    OF = R.alloc("of", 32*NR, 4)
    WF = [R.alloc("wf0", 16, 4), R.alloc("wf1", 16, 4)]
    vT = R.alloc("t", 8, 2); v16 = R.alloc("l16"); vDW = R.alloc("dw"); aW = R.alloc("aw", 2); vG = R.alloc("g", 4, 2)
    BF = R.alloc("bf", 16, 4)
    a(f"""
    s_cmp_ge_u32 s2, 256
    s_cbranch_scc1 L_k3_end
    s_load_dwordx2 s[4:5], s[0:1], {KA_WS}
    s_load_dwordx2 s[6:7], s[0:1], {KA_WO}
    s_load_dwordx2 s[20:21], s[0:1], {KA_OUT}
    v_lshrrev_b32 v1, 6, v0
    v_and_b32 v0, 63, v0
    v_readfirstlane_b32 s{sW}, v1
    s_and_b32 s33, s2, 7
    s_lshr_b32 s34, s2, 3
    s_and_b32 s{sM}, s33, 3
    s_lshl_b32 s{sM}, s{sM}, 2
    s_and_b32 s37, s34, 3
    s_add_u32 s{sM}, s{sM}, s37          ; m = 4*(x&3) + (idx&3)
    s_lshr_b32 s{sN}, s33, 2
    s_lshl_b32 s{sN}, s{sN}, 3
    s_lshr_b32 s37, s34, 2
    s_add_u32 s{sN}, s{sN}, s37          ; n = 8*(x>>2) + (idx>>2)
    v_lshlrev_b32 v{v16}, 4, v{L}
    """)
    a(f"""
    s_lshl_b32 s38, s{sW}, 5
    v_lshrrev_b32 v{vT}, 3, v{L}
    v_add_u32 v{vT}, s38, v{vT}
    v_lshlrev_b32 v{vT}, 11, v{vT}
    v_and_b32 v{vT+1}, 7, v{L}
    v_bfe_u32 v{vT+2}, v{L}, 4, 1
    v_lshlrev_b32 v{vT+2}, 2, v{vT+2}
    v_xor_b32 v{vT+1}, v{vT+1}, v{vT+2}
    v_lshl_add_u32 v{vDW}, v{vT+1}, 4, v{vT}
    s_lshl_b32 s40, s{sN}, 7
    s_lshl_b32 s41, s{sW}, 12
    s_lshl_b32 s42, s{sM}, 2
    s_add_u32 s42, s42, s{sW}
    s_lshl_b32 s42, s42, 16
    s_add_u32 s42, s42, {WS_OF}
    s_waitcnt lgkmcnt(0)
    """)
    srd(a, WS, 4, WS_SIZE)
    srd(a, WO, 6, 1024*1024*2)
    srd(a, OUTS, 20, 2048*1024*2)
    def dma_chunk(c):
        g = []
        for i in range(4):
            pre = f"s_add_u32 m0, s41, {c*16384}\n" if i == 0 else ""
            g.append(pre + f"s_add_u32 s43, s40, {c*128*2048 + i*(8*2048-1024)}\n" +
                     f"buffer_load_dwordx4 v{vDW}, s[{WO}:{WO+3}], s43 offen offset:{i*1024} lds")
        return g
    def o_load(c, j):
        pre = f"s_add_u32 s44, s42, {c*8192 + (j//4)*4096}\n" if j % 4 == 0 else ""
        return pre + f"buffer_load_dwordx4 {vr(OF+32*(c%NR)+4*j,4)}, v{v16}, s[{WS}:{WS+3}], s44 offen offset:{(j%4)*1024}"
    for c in range(NR):
        for g in dma_chunk(c): a(g)
        for j in range(8): a(o_load(c, j))
    a(f"""
    v_lshrrev_b32 v{vT+3}, 5, v{L}            ; h
    v_bfe_u32 v{vT+2}, v{L}, 2, 2             ; r
    v_lshl_add_u32 v{vT+5}, v{vT+3}, 2, v{vT+2}   ; 4h + r
    v_bfe_u32 v{vT+4}, v{L}, 4, 1
    v_lshlrev_b32 v{vT+4}, 1, v{vT+4}
    v_bfe_u32 v{vT+6}, v{L}, 1, 1
    v_add_u32 v{vT+4}, v{vT+4}, v{vT+6}
    v_bfe_u32 v{vT+6}, v{L}, 3, 1
    v_lshlrev_b32 v{vT+6}, 2, v{vT+6}
    v_xor_b32 v{vT+4}, v{vT+4}, v{vT+6}
    v_lshlrev_b32 v{vT+4}, 4, v{vT+4}
    v_lshl_add_u32 v{vT+4}, v{vT+5}, 7, v{vT+4}
    v_and_b32 v{vT+6}, 1, v{L}
    v_lshl_add_u32 v{aW}, v{vT+6}, 3, v{vT+4}
    v_xor_b32 v{aW+1}, 64, v{aW}
    """)
    def wreads(st, ks):
        g = []
        for u in range(2):
            for nt in range(2):
                for hf in range(2):
                    off = ((ks+u) % 32)*2048 + hf*1024
                    g.append(f"ds_read_b64_tr_b16 {vr(WF[st]+8*u+4*nt+2*hf,2)}, v{aW+nt} offset:{off}")
        return g
    def extra():
        g = []
        g.append(f"""
        v_lshrrev_b32 v{vT}, 4, v{L}
        v_lshlrev_b32 v{vT}, 12, v{vT}
        v_and_b32 v{vT+1}, 15, v{L}
        v_lshl_add_u32 v{vT}, v{vT+1}, 4, v{vT}
        s_lshl_b32 s45, s{sN}, 18
        s_lshl_b32 s46, s{sW}, 16
        s_add_u32 s45, s45, s46
        s_lshl_b32 s46, s{sM}, 8
        s_add_u32 s45, s45, s46
        s_add_u32 s45, s45, {WS_BT}
        s_add_u32 m0, s41, {LBT}
        buffer_load_dwordx4 v{vT}, s[{WS}:{WS+3}], s45 offen lds""")
        for i in range(1, 4):
            g.append(f"s_add_u32 s45, s45, {4*4096-1024}\nbuffer_load_dwordx4 v{vT}, s[{WS}:{WS+3}], s45 offen offset:{i*1024} lds")
        g.append(f"""
        v_and_b32 v{vT+1}, 31, v{L}
        v_lshlrev_b32 v{vT+1}, 2, v{vT+1}
        s_lshl_b32 s45, s{sM}, 9
        s_lshl_b32 s46, s{sW}, 7
        s_add_u32 s45, s45, s46
        s_add_u32 s45, s45, {WS_G}
        buffer_load_dword v{vG}, v{vT+1}, s[{WS}:{WS+3}], s45 offen""")
        return g
    outstanding = [12]*NR
    first = True
    for c in range(8):
        after = sum(outstanding[1:])
        a(f"s_waitcnt vmcnt({after})\ns_barrier")
        outstanding.pop(0)
        if c == 4:
            a(f"v_add_u32 v{aW}, 0x10000, v{aW}\nv_add_u32 v{aW+1}, 0x10000, v{aW+1}")
        for l in wreads(0, 8*c): a(l)
        issue = []
        n_new = 0
        if c + NR < 8:
            dm = dma_chunk(c+NR); n_new = 12
        elif c + NR == 8:
            dm = extra(); n_new = 5
        else:
            dm = []
        for pr in range(4):
            st = pr & 1
            rl = wreads(st ^ 1, 8*c + 2*pr + 2) if pr < 3 else []
            a(f"s_waitcnt lgkmcnt(0)")
            for u in range(2):
                j = 2*pr + u
                for nt in range(2):
                    cc = "0" if (c == 0 and j == 0) else vr(ACC+16*nt,16)
                    a(f"v_mfma_f32_32x32x16_bf16 {vr(ACC+16*nt,16)}, {vr(WF[st]+8*u+4*nt,4)}, {vr(OF+32*(c%NR)+4*j,4)}, {cc}")
                    for _ in range(3 if u == 0 else 1):
                        if rl: a(rl.pop(0))
                    if nt == 0 and dm and (j < 4 or c + NR == 8): a(dm.pop(0))
                if c + NR < 8 and j >= 4:
                    pass
            if c + NR < 8:
                for u in range(2): a(o_load(c+NR, 2*pr+u))
        while dm: a(dm.pop(0))
        if n_new: outstanding.append(n_new)
    a("s_waitcnt vmcnt(0)\ns_barrier")
    a(f"""
    v_lshlrev_b32 v{vT+5}, 8, v{vT+5}          ; (4h+r)*256
    v_bfe_u32 v{vT+4}, v{L}, 4, 1
    v_lshl_add_u32 v{vT+5}, v{vT+4}, 5, v{vT+5}
    v_and_b32 v{vT+4}, 3, v{L}
    v_lshl_add_u32 v{vT+5}, v{vT+4}, 3, v{vT+5}
    s_lshl_b32 s45, s{sW}, 6
    s_add_u32 s45, s45, {LBT}
    v_add_u32 v{vT+5}, s45, v{vT+5}
    """)
    for nt in range(2):
        for q in range(4):
            a(f"ds_read_b64_tr_b16 {vr(BF+8*nt+2*q,2)}, v{vT+5} offset:{(32*nt+8*q)*256}")
    a(f"""
    v_mov_b32 v{vG+1}, v{vG}
    v_sub_f32 v{vG+2}, 1.0, v{vG}
    v_cvt_pk_bf16_f32 v{vG+2}, v{vG+2}, v{vG+2}
    v_lshlrev_b32 v{vG+2}, 16, v{vG+2}
    v_mov_b32 v{vG+3}, v{vG+2}
    v_and_b32 v{vT}, 31, v{L}
    v_lshlrev_b32 v{vT}, 11, v{vT}
    v_lshl_add_u32 v{vT}, v{vT+3}, 4, v{vT}
    s_lshl_b32 s45, s{sM}, 18
    s_lshl_b32 s46, s{sW}, 16
    s_add_u32 s45, s45, s46
    s_add_u32 s45, s45, s40
    s_waitcnt lgkmcnt(0)
    """)
    E = OF
    for nt in range(2):
        for q in range(4):
            for p in range(2):
                e = E + 16*nt + 4*q + 2*p; bsrc = BF + 8*nt + 2*q + p
                a(f"v_lshlrev_b32 v{e}, 16, v{bsrc}\nv_and_b32 v{e+1}, 0xffff0000, v{bsrc}")
                a(f"v_pk_mul_f32 {vr(e,2)}, {vr(e,2)}, {vr(vG+2,2)}")
                a(f"v_pk_fma_f32 {vr(e,2)}, {vr(ACC+16*nt+4*q+2*p,2)}, {vr(vG,2)}, {vr(e,2)}")
                a(f"v_cvt_pk_bf16_f32 v{bsrc}, v{e}, v{e+1}")
        for qq in range(2):
            b0 = BF + 8*nt + 4*qq
            a(f"v_permlane32_swap_b32 v{b0}, v{b0+2}\nv_permlane32_swap_b32 v{b0+1}, v{b0+3}")
            a(f"buffer_store_dwordx4 {vr(b0,4)}, v{vT}, s[{OUTS}:{OUTS+3}], s45 offen offset:{64*nt+32*qq}")
    a("L_k3_end:\ns_endpgm")
    a.lines = fix_hazards(a.lines)
    return a.text(), kernel_desc(name, R.hi), f"; @launch kernel={name} grid=(256,1,1) block=(256,1,1) lds={LBT+16384}"

def build(cfg, out=OUT):
    ks = [gen_k1(cfg), gen_k2(cfg), gen_k3(cfg)]
    head = open(f"cdna_kernels/{NAME}.s.ref").read().split("\n")
    cm = [l for l in head if l.startswith(";") and "@launch" not in l and "Override launch" not in l and "grid=ceil" not in l]
    txt = "\n".join(cm) + "\n" + "\n".join(k[2] for k in ks) + "\n"
    txt += '.amdgcn_target "amdgcn-amd-amdhsa--gfx950"\n.text\n'
    txt += "".join(k[0] for k in ks)
    txt += '.section .rodata,"a"\n' + "".join(k[1] for k in ks)
    open(out, "w").write(txt)

if __name__ == "__main__":
    build(CFG)
```

```python
import sys, math
from asmlib import *

NAME = "gated_mix__linear_attn_block__ssm_conv_s4d__prompt"
OUT = f"cdna_kernels/{NAME}.s"

WS_PQ  = 0x0000000
WS_OF  = 0x0000000
WS_KVS = 0x0800000
WS_ZS  = 0x0820000
WS_G   = 0x0A10000
WS_FB  = 0x0A21000
WS_XT  = 0x0C00000
WS_BT  = 0x1000000
WS_KT  = 0x1400000
KR_ROW = 4160
WS_SIZE = 0x10000000
LOG2E = "0x3fb8aa3b"
EPS = "0x358637bd"
KA_X, KA_WQKV, KA_WO, KA_U, KA_LAR, KA_AI, KA_CR, KA_CI, KA_LDT, KA_DSK, KA_GW, KA_OUT, KA_DBG, KA_WS = [8*i for i in range(14)]

CFG = dict(stamp=False, st1="sc1", st1e="sc1", NR=4, UB=2, UB2=3, TK=5, SL=52, PL=1)
WS_ST = 0x8000000
VST = 255
def stamp(a, cfg, idx):
    if not cfg.get("stamp"): return
    a("s_memrealtime s[100:101]\ns_waitcnt lgkmcnt(0)")
    if isinstance(idx, int): a(f"v_writelane_b32 v{VST}, s100, {idx}")
    else: a(f"s_mov_b32 m0, {idx}\nv_writelane_b32 v{VST}, s100, m0")
def stamp_out(a, cfg, kidx, WS, sW):
    if not cfg.get("stamp"): return
    a("s_waitcnt vmcnt(0)")
    stamp(a, cfg, 63)
    a(f"""s_mov_b64 exec, -1
    s_lshl_b32 s100, s2, 3
    s_add_u32 s100, s100, s{sW}
    s_lshl_b32 s100, s100, 8
    s_add_u32 s100, s100, {WS_ST + kidx*0x100000}
    v_lshlrev_b32 v{VST-1}, 2, v0
    buffer_store_dword v{VST}, v{VST-1}, s[{WS}:{WS+3}], s100 offen""")

def interleave(*lists):
    out = []; lists = [list(l) for l in lists]
    while any(lists):
        for l in lists:
            if l: out.append(l.pop(0))
    return out

def gen_k1(cfg):
    name = "k1_kernel"
    a = Asm()
    kernel_head(a, name)
    NST = cfg.get('NST', 3); STG = 40960
    LDSB = NST*STG
    X, W, WS = 8, 12, 16
    sM0B = 25; sKA, sKB = 26, 27; sRd, sWr = 28, 29; sT = 30; sW = 31; sTmp = 32
    sM, sN = 35, 36
    SE = cfg["st1e"]
    a(f"""
    s_cmp_ge_u32 s2, 256
    s_cbranch_scc1 L_k1_end
    s_load_dwordx4 s[4:7], s[0:1], {KA_X}
    s_load_dwordx2 s[20:21], s[0:1], {KA_WS}
    s_load_dwordx2 s[50:51], s[0:1], {KA_DBG}
    v_lshrrev_b32 v1, 6, v0
    v_and_b32 v0, 63, v0
    v_readfirstlane_b32 s{sW}, v1
    s_and_b32 s33, s2, 7
    s_lshr_b32 s34, s2, 3
    s_and_b32 s{sM}, s33, 1
    s_lshl_b32 s{sM}, s{sM}, 3
    s_and_b32 s{sN}, s34, 7
    s_add_u32 s{sM}, s{sM}, s{sN}
    s_lshr_b32 s{sN}, s33, 1
    s_lshl_b32 s{sN}, s{sN}, 2
    s_lshr_b32 s37, s34, 3
    s_add_u32 s{sN}, s{sN}, s37
    s_cmp_ge_u32 s{sW}, 4
    s_cbranch_scc1 L_k1_b
    """)
    R = Regs(1, 254)
    L = 0
    ACC = R.alloc("acc", 96, 4)
    F0 = R.alloc("f0", 20, 4); F1 = R.alloc("f1", 20, 4)
    vDA = R.alloc("da", 4); vDB = R.alloc("db", 2)
    vRAb = R.alloc("rab", 4); vRBb = R.alloc("rbb", 1)
    vRA = R.alloc("ra", 4); vRB = R.alloc("rb", 1)
    vT = R.alloc("t", 8, 2)
    a(f"""
    s_lshl_b32 s37, s{sM}, 7
    s_lshl_b32 s38, s{sW}, 5
    s_add_u32 s37, s37, s38
    v_lshrrev_b32 v{vT+2}, 3, v{L}
    v_add_u32 v{vT+2}, s37, v{vT+2}
    v_lshlrev_b32 v{vT+2}, 11, v{vT+2}
    v_and_b32 v{vT+3}, 7, v{L}
    v_lshrrev_b32 v{vT+4}, 4, v{L}
    v_xor_b32 v{vT+5}, v{vT+3}, v{vT+4}
    v_xor_b32 v{vT+6}, 4, v{vT+5}
    v_lshl_add_u32 v{vT+5}, v{vT+5}, 4, v{vT+2}
    v_lshl_add_u32 v{vT+6}, v{vT+6}, 4, v{vT+2}
    """)
    for i in range(4):
        a(f"v_add_u32 v{vDA+i}, {i*8*2048 - i*1024}, v{vT+5+(i&1)}")
    a(f"""
    s_lshl_b32 s38, s{sW}, 4
    v_lshrrev_b32 v{vT+2}, 3, v{L}
    v_add_u32 v{vT+2}, s38, v{vT+2}
    v_mul_u32_u24 v{vT+2}, 6144, v{vT+2}
    v_and_b32 v{vT+4}, 1, v{vT+4}
    v_lshlrev_b32 v{vT+4}, 2, v{vT+4}
    v_xor_b32 v{vT+5}, v{vT+3}, v{vT+4}
    v_lshl_add_u32 v{vT+5}, v{vT+5}, 4, v{vT+2}
    s_lshl_b32 s38, s{sN}, 7
    v_add_u32 v{vDB}, s38, v{vT+5}
    v_add_u32 v{vDB+1}, {8*6144-1024}, v{vDB}
    s_lshl_b32 s39, s{sW}, 12
    s_lshl_b32 s40, s{sW}, 11
    s_add_u32 s40, s40, 16384
    s_mov_b32 s{sKA}, 0
    s_mov_b32 s{sKB}, 0
    s_mov_b32 s{sWr}, 0
    s_waitcnt lgkmcnt(0)
    """)
    srd(a, X, 4, 2048*1024*2)
    srd(a, W, 6, 1024*3072*2)
    srd(a, WS, 20, WS_SIZE)
    stamp(a, cfg, 32)
    def dma_list():
        g = []
        for i in range(4):
            pre = f"s_add_u32 m0, s{sWr}, s39\n" if i == 0 else ""
            g.append(pre + f"buffer_load_dwordx4 v{vDA+i}, s[{X}:{X+3}], s{sKA} offen offset:{i*1024} lds")
        for seg in range(3):
            for jj in range(2):
                pre = ""
                if jj == 0:
                    if seg == 0:
                        pre = f"s_add_u32 s{sM0B}, s{sWr}, s40\ns_mov_b32 m0, s{sM0B}\ns_mov_b32 s{sTmp}, s{sKB}\n"
                    else:
                        pre = f"s_add_u32 m0, s{sM0B}, {seg*8192}\ns_add_u32 s{sTmp}, s{sKB}, {seg*2048}\n"
                g.append(pre + f"buffer_load_dwordx4 v{vDB+jj}, s[{W}:{W+3}], s{sTmp} offen offset:{jj*1024} lds")
        return g
    def dma_advance():
        return f"""
        s_add_u32 s{sKA}, s{sKA}, 128
        s_add_u32 s{sKB}, s{sKB}, {64*6144}
        s_add_u32 s{sWr}, s{sWr}, {STG}
        s_cmp_eq_u32 s{sWr}, {STG*NST}
        s_cselect_b32 s{sWr}, 0, s{sWr}
        """
    for st in range(NST-1):
        for g in dma_list(): a(g)
        a(dma_advance())
    a(f"""
    s_and_b32 s38, s{sW}, 1
    s_lshl_b32 s38, s38, 13
    v_and_b32 v{vT+2}, 31, v{L}
    v_lshrrev_b32 v{vT+3}, 5, v{L}
    v_bfe_u32 v{vT+4}, v{L}, 1, 3
    v_xor_b32 v{vT+4}, v{vT+4}, v{vT+3}
    v_lshlrev_b32 v{vT+4}, 4, v{vT+4}
    v_lshl_add_u32 v{vT+4}, v{vT+2}, 7, v{vT+4}
    v_add_u32 v{vRAb}, s38, v{vT+4}
    """)
    for kk in range(1, 4):
        a(f"v_xor_b32 v{vRAb+kk}, {32*kk}, v{vRAb}")
    a(f"""
    s_lshr_b32 s38, s{sW}, 1
    s_lshl_b32 s38, s38, 2
    v_bfe_u32 v{vT+2}, v{L}, 2, 2
    v_lshl_add_u32 v{vT+5}, v{vT+3}, 3, v{vT+2}
    v_bfe_u32 v{vT+4}, v{L}, 4, 1
    v_lshlrev_b32 v{vT+4}, 1, v{vT+4}
    v_bfe_u32 v{vT+6}, v{L}, 1, 1
    v_add3_u32 v{vT+4}, v{vT+4}, v{vT+6}, s38
    v_bfe_u32 v{vT+6}, v{L}, 3, 1
    v_lshlrev_b32 v{vT+6}, 2, v{vT+6}
    v_xor_b32 v{vT+4}, v{vT+4}, v{vT+6}
    v_lshlrev_b32 v{vT+4}, 4, v{vT+4}
    v_lshl_add_u32 v{vT+4}, v{vT+5}, 7, v{vT+4}
    v_and_b32 v{vT+6}, 1, v{L}
    v_lshl_add_u32 v{vT+4}, v{vT+6}, 3, v{vT+4}
    v_add_u32 v{vRBb}, 16384, v{vT+4}
    v_mov_b32 v{vT+7}, {EPS}
    """)
    for r in range(96): a(f"v_mov_b32 v{ACC+r}, {'v%d' % (vT+7) if r < 64 else 0}")
    for r in range(20): a(f"v_mov_b32 v{F1+r}, 0")
    a(f"s_mov_b32 s{sRd}, 0\ns_mov_b32 s{sT}, 0")
    def reads_list(F, kk):
        g = []
        for t in range(2):
            g.append(f"ds_read_b128 {vr(F+4*t,4)}, v{vRA+kk} offset:{t*4096}")
        for seg in range(3):
            for hf in range(2):
                g.append(f"ds_read_b64_tr_b16 {vr(F+8+4*seg+2*hf,2)}, v{vRB} offset:{seg*8192+kk*2048+hf*512}")
        return g
    def mfma_list(F):
        g = []
        for t in range(2):
            for seg in range(3):
                acc = vr(ACC + 16*(seg*2+t), 16)
                xa = vr(F+4*t, 4); wb = vr(F+8+4*seg, 4)
                if seg == 0: g.append(f"v_mfma_f32_32x32x16_bf16 {acc}, {wb}, {xa}, {acc}")
                else: g.append(f"v_mfma_f32_32x32x16_bf16 {acc}, {xa}, {wb}, {acc}")
        return g
    def body(dma, vm):
        a(f"s_waitcnt vmcnt({vm}) lgkmcnt(0)\ns_barrier")
        stamp(a, cfg, f"s{sT}")
        dl = dma_list() if dma else []
        sets = [F0, F1]
        for ph in range(4):
            rl = reads_list(sets[ph & 1], ph)
            ml = mfma_list(sets[(ph+1) & 1])
            if ph > 0: a("s_waitcnt lgkmcnt(0)")
            for i in range(6):
                a(ml[i])
                for _ in range((3,3,2,0,0,0)[i]): a(rl.pop(0))
                if dl and (i in (2, 3, 4) if ph < 3 else i == 2):
                    a(dl.pop(0))
                if ph == 3 and i == 3:
                    if dma: a(dma_advance())
                    a(f"""
                    s_add_u32 s{sRd}, s{sRd}, {STG}
                    s_cmp_eq_u32 s{sRd}, {STG*NST}
                    s_cselect_b32 s{sRd}, 0, s{sRd}
                    """)
                if ph == 3 and i == 4:
                    for kk in range(4): a(f"v_add_u32 v{vRA+kk}, s{sRd}, v{vRAb+kk}")
                    a(f"v_add_u32 v{vRB}, s{sRd}, v{vRBb}")
                    a(f"""
                    s_add_u32 s{sT}, s{sT}, 1
                    s_cmp_lt_u32 s{sT}, {16-(NST-1)}
                    """)
        assert not dl
    for kk in range(4): a(f"v_mov_b32 v{vRA+kk}, v{vRAb+kk}")
    a(f"v_mov_b32 v{vRB}, v{vRBb}")
    a("L_k1_loop:")
    body(True, 10*(NST-2))
    a("s_cbranch_scc1 L_k1_loop")
    for k in range(NST-2, -1, -1): body(False, 10*k)
    a("s_waitcnt lgkmcnt(0)")
    for m in mfma_list(F1): a(m)
    stamp(a, cfg, 16)
    PK = F0
    PV = R.alloc("pv", 16, 4)
    PQ = R.alloc("pq", 16, 4)
    ONES = R.alloc("ones", 4, 4)
    TE = R.alloc("te", 8, 2)
    a(f"s_mov_b32 s42, {LOG2E}\ns_mov_b32 s43, {LOG2E}\ns_mov_b32 s44, {EPS}")
    for i in range(4): a(f"v_mov_b32 v{ONES+i}, 0x3f803f80")
    a(f"""
    s_lshl_b32 s37, s{sM}, 2
    s_and_b32 s38, s{sW}, 1
    s_lshl_b32 s38, s38, 1
    s_add_u32 s37, s37, s38
    s_lshl_b32 s37, s37, 5
    s_lshl_b32 s38, s{sN}, 1
    s_lshr_b32 s41, s{sW}, 1
    s_add_u32 s41, s41, s38          ; head
    s_add_u32 s37, s37, s41
    s_lshl_b32 s37, s37, 11
    s_add_u32 s38, s37, {32*2048}
    v_lshlrev_b32 v{vT}, 4, v{L}
    """)
    def phi_pack(src, dst, n):
        for p in range(0, n, 4):
            for q in range(2):
                s = src + p + 2*q; t = TE + 2*q + (4 if (p//4) & 1 else 0)
                a(f"v_pk_mul_f32 {vr(t,2)}, {vr(s,2)}, s[42:43]")
            for q in range(2):
                s = src + p + 2*q; t = TE + 2*q + (4 if (p//4) & 1 else 0)
                a(f"v_exp_f32 v{t}, v{t} clamp\nv_exp_f32 v{t+1}, v{t+1} clamp")
                a(f"v_max_f32 v{s}, s44, v{s}\nv_max_f32 v{s+1}, s44, v{s+1}")
            for q in range(2):
                s = src + p + 2*q; t = TE + 2*q + (4 if (p//4) & 1 else 0)
                a(f"v_pk_add_f32 {vr(s,2)}, {vr(s,2)}, {vr(t,2)}")
            for q in range(2):
                s = src + p + 2*q
                a(f"v_cvt_pk_bf16_f32 v{dst+(p+2*q)//2}, v{s}, v{s+1}")
    KV = ACC + 64
    for i in range(16):
        a(f"v_cvt_pk_bf16_f32 v{PV+i}, v{ACC+64+2*i}, v{ACC+64+2*i+1}")
    phi_pack(ACC+32, PK, 32)
    for i in range(4):
        c = "0" if i == 0 else vr(KV,16)
        a(f"v_mfma_f32_32x32x16_bf16 {vr(KV,16)}, {vr(PK+4*i,4)}, {vr(PV+4*i,4)}, {c}")
    for i in range(4):
        c = "0" if i == 0 else vr(KV+16,16)
        a(f"v_mfma_f32_32x32x16_bf16 {vr(KV+16,16)}, {vr(ONES,4)}, {vr(PK+4*i,4)}, {c}")
    XB = (14 % NST)*STG
    a(f"""
    s_mov_b32 s46, 0x07060302
    s_mul_i32 s45, s{sW}, 5120
    s_add_u32 s45, s45, {XB}
    v_add_u32 v{vT+1}, s45, v{vT}
    """)
    def qpart(t, h):
        phi_pack(ACC+16*t+8*h, PQ+8*t+4*h, 8)
        x0 = ACC+16*t+8*h; d0 = PQ+8*t+4*h
        a(f"v_add_u32 v{x0}, 0x10000, v{x0}\nv_perm_b32 v{d0}, v{d0}, v{x0}, s46\nv_and_b32 v{d0}, -2, v{d0}")
        a(f"buffer_store_dwordx4 {vr(PQ+8*t+4*h,4)}, v{vT}, s[{WS}:{WS+3}], s{37+t} offen offset:{h*1024} {SE}")
    for q in range(4):
        a(f"ds_write_b128 v{vT+1}, {vr(KV+4*q,4)} offset:{q*1024}")
    a(f"ds_write_b32 v{vT+1}, v{KV+16} offset:4096")
    a("s_waitcnt lgkmcnt(0)\ns_barrier")
    stamp(a, cfg, 17)
    qpart(0, 0); qpart(0, 1); qpart(1, 0); qpart(1, 1)
    stamp_out(a, cfg, 0, WS, sW)
    a("s_endpgm")
    hiG = R.hi
    a("L_k1_b:")
    hiB = gen_k1_b(a, cfg, X, W, WS, sW, sM, sN, STG, NST, XB)
    a("L_k1_end:\ns_endpgm")
    a.lines = fix_hazards(a.lines)
    return a.text(), kernel_desc(name, 256 if cfg.get("stamp") else max(hiG, hiB)), f"; @launch kernel={name} grid=(256,1,1) block=(512,1,1) lds={LDSB+32768}"

import struct
def fl(x): return "0x%08x" % struct.unpack("<I", struct.pack("<f", float(x)))[0]

def gen_k1_b(a, cfg, X, W, WS, sW, sM, sN, STG, NST, XB):
    R = Regs(1, 254)
    L = 0
    ST = cfg["st1"]
    LDSB = NST*STG
    sB = 37; sT = 30; sD = 38; sLB = 39
    PF = 40; sPFo, sPFinc = 44, 45
    DB = 52; P0 = 56
    sF = 72; sInv = 73
    vPF = R.alloc("pf"); vPFd = R.alloc("pfd")
    vT = R.alloc("t", 12, 2)
    v16 = R.alloc("l16"); vZero = R.alloc("zero", 4, 4); vPoi = R.alloc("poi", 4, 4)
    PR = R.alloc("par", 8); vDT = R.alloc("dt"); vZf = R.alloc("zf")
    a(f"""
    s_load_dwordx8 s[76:83], s[0:1], {KA_LAR}
    s_load_dwordx2 s[84:85], s[0:1], {KA_LDT}
    s_load_dwordx2 s[86:87], s[0:1], {KA_WO}
    s_sub_u32 s{sB}, s{sW}, 4
    s_lshl_b32 s{sD}, s2, 2
    s_add_u32 s{sD}, s{sD}, s{sB}
    s_lshl_b32 s{sLB}, s{sB}, 13
    s_add_u32 s{sLB}, s{sLB}, {LDSB}
    v_lshlrev_b32 v{vT}, 1, v{L}
    s_lshl_b32 s46, s{sD}, 8
    s_lshl_b32 s47, s{sD}, 1
    v_mov_b32 v{vZero}, 0
    s_waitcnt lgkmcnt(0)
    """)
    srd(a, X, 4, 2048*1024*2)
    srd(a, W, 6, 1024*3072*2)
    srd(a, WS, 20, WS_SIZE)
    srd(a, DB, 50, 256)
    stamp(a, cfg, 32)
    a(f"""
    s_mov_b32 s{PF+3}, 0x00020000
    s_cmp_eq_u32 s{sB}, 0
    s_cbranch_scc0 L_k1_ubw
    s_mov_b32 s{PF}, s{X}
    s_mov_b32 s{PF+1}, s{X+1}
    s_mov_b32 s{PF+2}, {2048*1024*2}
    v_lshrrev_b32 v{vPF}, 3, v{L}
    v_lshlrev_b32 v{vPF}, 11, v{vPF}
    v_and_b32 v{vT+3}, 7, v{L}
    v_lshl_add_u32 v{vPF}, v{vT+3}, 7, v{vPF}
    s_lshl_b32 s{sPFo}, s2, 14
    s_mov_b32 s{sPFinc}, 1024
    s_branch L_k1_ubj
    L_k1_ubw:
    s_mov_b32 s{PF}, s{W}
    s_mov_b32 s{PF+1}, s{W+1}
    s_cmp_eq_u32 s{sB}, 3
    s_cselect_b32 s{PF+2}, 0, {1024*3072*2}
    v_lshlrev_b32 v{vPF}, 7, v{L}
    v_mov_b32 v{vT+3}, 0x7ffffff0
    v_cmp_gt_u32 vcc, 48, v{L}
    s_mul_i32 s{sPFo}, s2, {2*6144}
    s_sub_u32 s47, s{sB}, 1
    s_mul_i32 s47, s47, 6144
    s_add_u32 s{sPFo}, s{sPFo}, s47
    s_mov_b32 s{sPFinc}, {512*6144}
    v_cndmask_b32 v{vPF}, v{vT+3}, v{vPF}, vcc
    L_k1_ubj:
    """)
    pf = f"buffer_load_dword v{vPFd}, v{vPF}, s[{PF}:{PF+3}], s{sPFo} offen\ns_add_u32 s{sPFo}, s{sPFo}, s{sPFinc}"
    npf = 2 if cfg["UB"] == 1 else 1
    for i in range(npf): a(pf)
    TA = R.alloc("ta", 8); TR = R.alloc("tr", 16, 4); vXs = R.alloc("xs")
    a(f"""
    v_lshlrev_b32 v{v16}, 4, v{L}
    v_mov_b32 v{vZero+1}, 0
    v_mov_b32 v{vZero+2}, 0
    v_mov_b32 v{vZero+3}, 0
    v_mov_b32 v{vPoi}, -1
    v_mov_b32 v{vPoi+1}, -1
    v_mov_b32 v{vPoi+2}, -1
    v_mov_b32 v{vPoi+3}, -1
    v_lshrrev_b32 v{vT}, 4, v{L}
    v_bfe_u32 v{vT+1}, v{L}, 2, 2
    v_lshl_add_u32 v{vT+1}, v{vT}, 3, v{vT+1}
    v_lshlrev_b32 v{vT+1}, 7, v{vT+1}
    v_bfe_u32 v{vT+2}, v{L}, 1, 1
    v_bfe_u32 v{vT+3}, v{L}, 3, 1
    v_xor_b32 v{vT+2}, v{vT+2}, v{vT+3}
    v_bfe_u32 v{vT+3}, v{L}, 4, 1
    v_lshl_add_u32 v{vT+2}, v{vT+3}, 2, v{vT+2}
    v_lshl_add_u32 v{vT+1}, v{vT+2}, 4, v{vT+1}
    v_and_b32 v{vT+2}, 1, v{L}
    v_lshl_add_u32 v{vT+1}, v{vT+2}, 3, v{vT+1}
    s_lshl_b32 s46, s{sB}, 12
    s_mul_hi_u32 s47, s{sN}, {(2**32 + NST - 1)//NST:#x}
    s_mul_i32 s47, s47, {NST}
    s_sub_u32 s47, s{sN}, s47
    s_mul_i32 s47, s47, {STG}
    s_add_u32 s46, s46, s47
    """)
    for cb in range(4):
        for sec in range(2):
            a(f"v_xor_b32 v{TA+2*cb+sec}, {(32*cb) ^ (32*sec)}, v{vT+1}")
    for i in range(8): a(f"v_add_u32 v{TA+i}, s46, v{TA+i}")
    vH = R.alloc("half"); AW = R.alloc("aw", 4); AR = R.alloc("ar", 2)
    a(f"""
    v_and_b32 v{vT+1}, 15, v{L}
    v_lshlrev_b32 v{vT+1}, 12, v{vT+1}
    v_lshl_add_u32 v{vXs}, v{vT}, 4, v{vT+1}
    s_lshl_b32 s46, s{sN}, 18
    s_lshl_b32 s47, s{sM}, 8
    s_add_u32 s46, s46, s47
    s_lshl_b32 s47, s{sB}, 6
    s_add_u32 s46, s46, s47
    s_add_u32 s89, s46, {WS_XT}
    s_lshl_b32 s90, s{sD}, 12
    s_add_u32 s90, s90, {WS_OF}
    s_sub_u32 s46, s{sN}, 7
    s_cmp_lt_u32 s46, 2
    s_cselect_b32 s91, 12, 9
    s_cmp_eq_u32 s{sM}, s{sN}
    s_cselect_b32 s92, 2, 99
    s_cmp_eq_u32 s92, s{sB}
    s_cselect_b32 s92, 0, 99
    s_cselect_b32 s91, s91, 99
    v_lshrrev_b32 v{vH}, 5, v{L}
    v_bfe_u32 v{vT+1}, v{L}, 1, 2
    v_lshlrev_b32 v{vT+1}, 4, v{vT+1}
    v_lshl_add_u32 v{AW}, v{L}, 6, v{vT+1}
    v_add_u32 v{AW}, s{sLB}, v{AW}
    """)
    for q in range(1, 4): a(f"v_xor_b32 v{AW+q}, {16*q}, v{AW}")
    a(f"""
    v_bfe_u32 v{vT+1}, v{L}, 2, 2
    v_lshl_add_u32 v{vT+2}, v{vH}, 3, v{vT+1}
    v_bfe_u32 v{vT+3}, v{L}, 4, 1
    v_bfe_u32 v{vT+4}, v{L}, 1, 1
    v_lshl_add_u32 v{vT+3}, v{vT+3}, 1, v{vT+4}
    v_bfe_u32 v{vT+4}, v{L}, 3, 1
    v_xor_b32 v{vT+3}, v{vT+3}, v{vT+4}
    v_lshlrev_b32 v{vT+3}, 4, v{vT+3}
    v_lshl_add_u32 v{vT+3}, v{vT+2}, 6, v{vT+3}
    v_and_b32 v{vT+4}, 1, v{L}
    v_lshl_add_u32 v{vT+3}, v{vT+4}, 3, v{vT+3}
    v_add_u32 v{AR}, s{sLB}, v{vT+3}
    v_xor_b32 v{AR+1}, 32, v{AR}
    s_mov_b32 s93, 0x05040100
    s_mov_b32 s{sT}, 0
    """)
    TK = cfg.get("TK", 12)
    ntr = [0]
    def transp(cmp):
        k = ntr[0]; ntr[0] += 1
        a(f"s_cmp_lg_u32 {cmp}, s{sN}\ns_cbranch_scc1 L_k1_tr{k}")
        for cb in range(4):
            for sec in range(2):
                a(f"ds_read_b64_tr_b16 {vr(TR+4*cb+2*sec,2)}, v{TA+2*cb+sec} offset:{sec*512}")
        a("s_waitcnt lgkmcnt(0)")
        for cb in range(4):
            a(f"buffer_store_dwordx4 {vr(TR+4*cb,4)}, v{vXs}, s[{WS}:{WS+3}], s89 offen {ST}")
            a(f"s_add_u32 s89, s89, {16*4096}")
        a(f"L_k1_tr{k}:")
    a("L_k1_hl:\ns_barrier")
    PL = cfg.get("PL", 6)
    transp(f"s{sT}")
    a(f"""
    s_cmp_lg_u32 s{sT}, {PL}
    s_cbranch_scc1 L_k1_h2
    v_lshlrev_b32 v{vT}, 1, v{L}
    s_lshl_b32 s46, s{sD}, 8
    s_lshl_b32 s47, s{sD}, 1
    """)
    srd(a, P0, 84, 2048)
    a(f"buffer_load_ushort v{vDT}, v{vZero}, s[{P0}:{P0+3}], s47 offen")
    for arr in range(4):
        srd(a, P0+4*(arr & 1)+4, 76+2*arr, 1024*128*2)
        for ch in range(2):
            b = P0+4*(arr & 1)+4
            a(f"buffer_load_ushort v{PR+2*arr+ch}, v{vT}, s[{b}:{b+3}], s46 offen offset:{128*ch}")
    a(f"""
    L_k1_h2:
    s_cmp_lg_u32 s{sT}, s92
    s_cbranch_scc1 L_k1_h3
    s_lshl_b32 s47, s{sN}, 13
    s_add_u32 s47, s47, {WS_KVS}
    s_add_u32 s49, s47, 4096
    """)
    for i in range(4):
        a(f"buffer_store_dwordx4 {vr(vZero,4)}, v{v16}, s[{WS}:{WS+3}], s47 offen offset:{1024*i} sc1")
        a(f"buffer_store_dwordx4 {vr(vZero,4)}, v{v16}, s[{WS}:{WS+3}], s49 offen offset:{1024*i} sc1")
    a(f"""
    s_lshl_b32 s47, s{sN}, 8
    s_add_u32 s47, s47, {WS_ZS}
    s_mov_b64 exec, 0xffff
    buffer_store_dwordx4 {vr(vZero,4)}, v{v16}, s[{WS}:{WS+3}], s47 offen sc1
    s_mov_b64 exec, -1
    L_k1_h3:
    s_cmp_lg_u32 s{sT}, 2
    s_cbranch_scc1 L_k1_h4
    s_lshl_b32 s46, s{sD}, 3
    s_add_u32 s46, s46, {WS_G}
    s_lshl_b32 s47, s{sD}, 2
    s_add_u32 s47, s47, {WS_FB}
    s_mov_b64 exec, 1
    buffer_store_dwordx2 {vr(vPoi,2)}, v{vZero}, s[{WS}:{WS+3}], s46 offen
    buffer_store_dword v{vZero}, v{vZero}, s[{WS}:{WS+3}], s47 offen
    s_mov_b64 exec, -1
    L_k1_h4:
    """)
    if cfg["UB"] == 2:
        a(f"""
        s_cmp_lg_u32 s{sT}, {cfg["UB2"]}
        s_cbranch_scc1 L_k1_h6
        {pf}
        L_k1_h6:
        """)
    a(f"""
    s_add_u32 s{sT}, s{sT}, 1
    s_cmp_lt_u32 s{sT}, {TK}
    s_cbranch_scc1 L_k1_hl
    """)
    kg = Asm()
    kgen(kg, cfg, R, L, vT, PR, vDT, vH, AW, AR, sF, sInv, sD, WS)
    kl = kg.lines
    print("kgen instrs", len(kl))
    SL = cfg.get("SL", 80)
    vW = R.alloc("wpf")
    for t in range(TK, 16):
        a("s_barrier")
        stamp(a, cfg, t)
        if t == TK:
            a(f"""
            s_sub_u32 s94, s{sN}, {PL+1}
            s_cmp_lt_u32 s94, {TK-PL-1}
            s_cbranch_scc1 L_k1_pw7
            s_waitcnt vmcnt(3)
            s_branch L_k1_pw
            L_k1_pw7:
            s_waitcnt vmcnt(7)
            L_k1_pw:
            """)
        if t in (9, 12):
            a(f"""
            s_cmp_lg_u32 s91, {t}
            s_cbranch_scc1 L_k1_zp{t}
            s_lshl_b32 s94, s{sN}, 2
            v_mov_b32 v{vZf}, 16
            s_waitcnt vmcnt(0)
            s_mov_b64 exec, 1
            buffer_store_dword v{vZf}, v{vZero}, s[{DB}:{DB+3}], s94 offen sc1
            s_mov_b64 exec, -1
            L_k1_zp{t}:
            """)
        transp(str(t))
        if t == cfg.get("LP", 14):
            srd(a, P0, 86, 1024*1024*2)
            a(f"""
            v_lshrrev_b32 v{vW}, 3, v{L}
            v_lshlrev_b32 v{vW}, 11, v{vW}
            v_and_b32 v{vPFd}, 7, v{L}
            v_lshl_add_u32 v{vW}, v{vPFd}, 7, v{vW}
            s_lshr_b32 s94, s2, 3
            s_lshl_b32 s94, s94, 16
            s_bfe_u32 s95, s2, 0x10002
            s_lshl_b32 s95, s95, 10
            s_add_u32 s94, s94, s95
            s_lshl_b32 s95, s{sB}, 14
            s_add_u32 s94, s94, s95
            buffer_load_dword v{vPFd}, v{vW}, s[{P0}:{P0+3}], s94 offen
            """)
        if t == 15:
            a(f"s_lshl_b32 s56, s{sN}, 2\nbuffer_load_dword v{vZf}, v{vZero}, s[{DB}:{DB+3}], s56 offen sc1")
            cut = next(i for i, l in enumerate(kl) if l.startswith("buffer_store")) - 1
            for l in kl[:cut]: a(l)
            kl = kl[cut:]
        else:
            for l in kl[:SL]: a(l)
            kl = kl[SL:]
    stamp(a, cfg, 1)
    RA = TR; RB = TR + 8; RZ = TA; vA1 = TA+2; vA2 = TA+3; vA3 = TA+4
    a(f"""
    s_mov_b32 s57, 0
    L_k1_zw:
    s_add_u32 s57, s57, 1
    s_waitcnt vmcnt(0)
    v_readfirstlane_b32 s58, v{vZf}
    s_cmp_ge_u32 s58, 16
    s_cbranch_scc1 L_k1_zok
    s_cmp_gt_u32 s57, 0x40000
    s_cbranch_scc1 L_k1_zok
    s_sleep 2
    buffer_load_dword v{vZf}, v{vZero}, s[{DB}:{DB+3}], s56 offen sc1
    s_branch L_k1_zw
    L_k1_zok:
    """)
    for l in kl: a(l)
    a(f"""
    s_lshr_b32 s46, s{sB}, 1
    s_and_b32 s47, s{sB}, 1
    s_mul_i32 s48, s46, {2*5120}
    s_add_u32 s48, s48, {XB}
    v_add_u32 v{vA2}, s48, v{v16}
    s_lshl_b32 s49, s47, 11
    v_add_u32 v{vA1}, s49, v{vA2}
    s_lshl_b32 s48, s{sN}, 1
    s_add_u32 s48, s48, s46
    s_lshl_b32 s46, s48, 7
    s_add_u32 s46, s46, {WS_ZS}
    s_lshl_b32 s48, s48, 12
    s_add_u32 s48, s48, s49
    s_add_u32 s48, s48, {WS_KVS}
    v_lshlrev_b32 v{vA3}, 2, v{L}
    """)
    stamp(a, cfg, 2)
    a("s_barrier")
    for q in range(2):
        a(f"ds_read_b128 {vr(RA+4*q,4)}, v{vA1} offset:{q*1024}")
        a(f"ds_read_b128 {vr(RB+4*q,4)}, v{vA1} offset:{5120+q*1024}")
    a(f"ds_read_b32 v{RZ}, v{vA2} offset:4096\nds_read_b32 v{RZ+1}, v{vA2} offset:{5120+4096}")
    for q in range(2):
        a(f"s_waitcnt lgkmcnt({4-2*q})")
        for r in range(4): a(f"v_add_f32 v{RA+4*q+r}, v{RA+4*q+r}, v{RB+4*q+r}")
        for r in range(4):
            a(f"buffer_atomic_add_f32 v{RA+4*q+r}, v{vA3}, s[{WS}:{WS+3}], s48 offen offset:{(4*q+r)*256}")
    a(f"""
    s_waitcnt lgkmcnt(0)
    v_add_f32 v{RZ}, v{RZ}, v{RZ+1}
    s_cmp_lg_u32 s47, 0
    s_cbranch_scc1 L_k1_hz
    s_mov_b32 exec_hi, 0
    buffer_atomic_add_f32 v{RZ}, v{vA3}, s[{WS}:{WS+3}], s46 offen
    s_mov_b64 exec, -1
    L_k1_hz:
    """)
    stamp_out(a, cfg, 0, WS, sW)
    a("s_endpgm")
    return R.hi

def kgen(c, cfg, R, L, vT, PR, vDT, vH, AW, AR, sF, sInv, sD, WS):
    mk = R.mark()
    ST = cfg["st1"]
    c(f"v_lshlrev_b32 v{vDT}, 16, v{vDT}")
    for i in range(8): c(f"v_lshlrev_b32 v{PR+i}, 16, v{PR+i}")
    vM = vT
    c(f"""
    v_mul_f32 v{vDT}, {LOG2E}, v{vDT}
    v_max_f32 v{vM}, |v{PR+4}|, |v{PR+5}|
    v_exp_f32 v{vDT}, v{vDT}
    v_max3_f32 v{vM}, |v{PR+6}|, |v{PR+7}|, v{vM}
    v_mul_f32 v{PR}, {LOG2E}, v{PR}
    v_mul_f32 v{PR+1}, {LOG2E}, v{PR+1}
    v_max_f32_dpp v{vM}, v{vM}, v{vM} quad_perm:[1,0,3,2] row_mask:0xf bank_mask:0xf
    v_exp_f32 v{PR}, v{PR}
    v_exp_f32 v{PR+1}, v{PR+1}
    v_max_f32_dpp v{vM}, v{vM}, v{vM} quad_perm:[2,3,0,1] row_mask:0xf bank_mask:0xf
    v_cvt_pk_bf16_f32 v{vDT}, v{vDT}, v{vDT}
    v_lshlrev_b32 v{vDT}, 16, v{vDT}
    v_max_f32_dpp v{vM}, v{vM}, v{vM} row_half_mirror row_mask:0xf bank_mask:0xf
    v_cvt_pk_bf16_f32 v{PR}, v{PR}, v{PR+1}
    v_and_b32 v{PR+1}, 0xffff0000, v{PR}
    v_max_f32_dpp v{vM}, v{vM}, v{vM} row_mirror row_mask:0xf bank_mask:0xf
    v_lshlrev_b32 v{PR}, 16, v{PR}
    v_mul_f32 v{PR}, v{PR}, v{vDT}
    v_readlane_b32 s46, v{vM}, 0
    v_readlane_b32 s47, v{vM}, 16
    v_readlane_b32 s48, v{vM}, 32
    v_readlane_b32 s49, v{vM}, 48
    v_mul_f32 v{PR+1}, v{PR+1}, v{vDT}
    v_mul_f32 v{PR+2}, v{PR+2}, v{vDT}
    v_mul_f32 v{PR+3}, v{PR+3}, v{vDT}
    s_max_u32 s46, s46, s47
    s_max_u32 s48, s48, s49
    s_max_u32 s46, s46, s48
    s_lshr_b32 s46, s46, 23
    s_min_u32 s46, s46, 252
    s_sub_u32 s{sInv}, 253, s46
    s_lshl_b32 s{sInv}, s{sInv}, 23
    s_add_u32 s{sF}, s46, 2
    s_lshl_b32 s{sF}, s{sF}, 23
    v_mul_f32 v{PR}, 0xbfb8aa3b, v{PR}
    v_mul_f32 v{PR+1}, 0xbfb8aa3b, v{PR+1}
    v_mul_f32 v{PR+2}, 0.15915494, v{PR+2}
    v_mul_f32 v{PR+3}, 0.15915494, v{PR+3}
    """)
    D = R.alloc("D", 16, 4)
    FA = R.alloc("fa", 32, 4); FB = R.alloc("fb", 16, 4)
    Vr = R.alloc("vr", 16, 4); Vi = R.alloc("vi", 16, 4)
    Ur = R.alloc("ur", 12, 4); Ui = R.alloc("ui", 12, 4)
    E = {p: R.alloc(f"e{p}", 2, 2) for p in (1, 2, 4, 16, 32, 64, 128, 256, 512, 1024)}
    PS = []
    for ps in range(2):
        PS.append(dict(E8=R.alloc("e8", 2, 2), C0=R.alloc("c0", 2, 2), C4=R.alloc("c4", 2, 2),
                       F={p: R.alloc(f"f{p}") for p in (1, 2, 16, 32, 64, 128, 256, 512, 1024)}))
    Gp = R.alloc("gp", 2)
    def direct(dst, p, al, be, t0, t1):
        pre = [] if p == 1 else [f"v_mul_f32 v{t0}, {fl(p)}, v{al}", f"v_mul_f32 v{t1}, {fl(p)}, v{be}"]
        a0 = al if p == 1 else t0; b0 = be if p == 1 else t1
        return pre + [f"v_exp_f32 v{t0}, v{a0}", f"v_fract_f32 v{t1}, v{b0}",
                f"v_cos_f32 v{dst}, v{t1}", f"v_sin_f32 v{dst+1}, v{t1}",
                f"v_mul_f32 v{dst}, v{dst}, v{t0}", f"v_mul_f32 v{dst+1}, v{dst+1}, v{t0}"]
    def cmul32(dst, z, e, conj):
        n0, n1 = ("", "-") if conj else ("-", "")
        return [f"v_mul_f32 v{dst}, v{z}, v{e}", f"v_mul_f32 v{dst+1}, v{z+1}, v{e}",
                f"v_fma_f32 v{dst}, {n0}v{z+1}, v{e+1}, v{dst}", f"v_fma_f32 v{dst+1}, {n1}v{z}, v{e+1}, v{dst+1}"]
    def sq(dst, z):
        return [f"v_mul_f32 v{dst}, v{z}, v{z}", f"v_mul_f32 v{dst+1}, v{z}, v{z+1}",
                f"v_fma_f32 v{dst}, -v{z+1}, v{z+1}, v{dst}", f"v_add_f32 v{dst+1}, v{dst+1}, v{dst+1}"]
    def cv(f, e): return [f"v_cvt_pk_f16_f32 v{f}, v{e}, v{e+1}"]
    def hm(yr, yi, xr, xi, f, conj):
        nr = "" if conj else " neg_lo:[1,0,0] neg_hi:[1,0,0]"
        ni = " neg_lo:[1,0,0] neg_hi:[1,0,0]" if conj else ""
        return [f"v_pk_mul_f16 v{yr}, v{xr}, v{f} op_sel_hi:[1,0]",
                f"v_pk_mul_f16 v{yi}, v{xi}, v{f} op_sel_hi:[1,0]",
                f"v_pk_fma_f16 v{yr}, v{xi}, v{f}, v{yr} op_sel:[0,1,0] op_sel_hi:[1,1,1]{nr}",
                f"v_pk_fma_f16 v{yi}, v{xr}, v{f}, v{yi} op_sel:[0,1,0] op_sel_hi:[1,1,1]{ni}"]
    def factors(ps):
        al, be, cr, ci = PR+ps, PR+2+ps, PR+4+ps, PR+6+ps
        P = PS[ps]; F = P["F"]
        l = interleave(direct(P["E8"], 8, al, be, vT, vT+1), direct(E[1], 1, al, be, vT+2, vT+3), direct(E[256], 256, al, be, vT+4, vT+5))
        l += [f"v_mul_f32 v{P['C0']}, s{sInv}, v{cr}", f"v_mul_f32 v{P['C0']+1}, -s{sInv}, v{ci}"]
        l1 = sq(E[16], P["E8"]) + cv(F[16], E[16]) + sq(E[32], E[16]) + cv(F[32], E[32]) + sq(E[64], E[32]) + cv(F[64], E[64]) + sq(E[128], E[64]) + cv(F[128], E[128])
        l2 = cv(F[1], E[1]) + sq(E[2], E[1]) + cv(F[2], E[2]) + sq(E[4], E[2]) + cmul32(P["C4"], P["C0"], E[4], True)
        l3 = cv(F[256], E[256]) + sq(E[512], E[256]) + cv(F[512], E[512]) + sq(E[1024], E[512]) + cv(F[1024], E[1024])
        return l + interleave(l1, l2, l3)
    def vtab(ps):
        P = PS[ps]; F = P["F"]
        v = [f"v_cvt_pk_f16_f32 v{Vr}, 1.0, v{P['E8']}", f"v_cvt_pk_f16_f32 v{Vi}, 0, v{P['E8']+1}"]
        for lv, f in ((1, 16), (2, 32), (4, 64), (8, 128)):
            for q in range(lv):
                v += hm(Vr+lv+q, Vi+lv+q, Vr+q, Vi+q, F[f], False)
        return v
    def vwr():
        l = []
        for qq in range(4):
            l += [f"ds_write_b128 v{AW+qq}, {vr(Vr+4*qq,4)}", f"ds_write_b128 v{AW+qq}, {vr(Vi+4*qq,4)} offset:4096"]
        return l
    def utab(ps):
        P = PS[ps]; F = P["F"]
        u = [f"v_cvt_pk_f16_f32 v{Ur}, v{P['C0']}, v{P['C4']}", f"v_cvt_pk_f16_f32 v{Ui}, v{P['C0']+1}, v{P['C4']+1}"]
        def um(dst, src, f): return hm(Ur+dst, Ui+dst, Ur+src, Ui+src, F[f], True)
        u += interleave(um(1, 0, 2), um(4, 0, 256), um(2, 0, 1), um(6, 0, 512))
        u += [f"v_perm_b32 v{Gp}, v{Ur+4}, v{Ur}, s93", f"v_perm_b32 v{Gp+1}, v{Ui+4}, v{Ui}, s93"]
        u += interleave(um(3, 1, 1), um(5, 1, 256), um(7, 4, 512), hm(Ur+8, Ui+8, Gp, Gp+1, F[1024], True))
        u += interleave(um(9, 8, 512), um(10, 8, 1024))
        return u
    def uwr():
        l = []
        for qq in range(3):
            l += [f"ds_write_b128 v{AW+qq}, {vr(Ur+4*qq,4)}", f"ds_write_b128 v{AW+qq}, {vr(Ui+4*qq,4)} offset:4096"]
        return l
    def ard():
        return [f"ds_read_b64_tr_b16 {vr(FA+4*ks+2*sec,2)}, v{AR+sec} offset:{ks*1024+sec*256}" for ks in range(8) for sec in range(2)]
    def mix(main, side, every):
        out = []; side = list(side)
        for i, l in enumerate(main):
            out.append(l)
            if i % every == every-1 and side: out.append(side.pop(0))
        return out + side
    def mm(ps, filler):
        def rd(ks):
            b = FB + 4*(ks & 3)
            return [f"ds_read_b64_tr_b16 {vr(b+2*sec,2)}, v{AR+sec} offset:{ks*1024+sec*256}" for sec in range(2)]
        for ks in range(3):
            for l in rd(ks): c(l)
        per = (len(filler)+7)//8
        for ks in range(8):
            for l in filler[:per]: c(l)
            filler = filler[per:]
            left = min(2, 7-ks)
            c(f"s_waitcnt lgkmcnt({2*left})")
            cc = "0" if (ps == 0 and ks == 0) else vr(D,16)
            c(f"v_mfma_f32_32x32x16_f16 {vr(D,16)}, {vr(FA+4*ks,4)}, {vr(FB+4*(ks&3),4)}, {cc}")
            if ks + 3 < 8:
                for l in rd(ks+3): c(l)
    c(f"v_mov_b32 v{Ur+11}, 0\nv_mov_b32 v{Ui+11}, 0")
    for l in factors(0): c(l)
    for l in utab(0): c(l)
    for l in mix(vtab(0), uwr() + ard(), 3): c(l)
    for l in mix(factors(1), vwr(), 4): c(l)
    mm(0, utab(1))
    for l in mix(vtab(1), uwr() + ard(), 3): c(l)
    vF = vT+8; vJ = vT+10; vH128 = vT+11
    TW = vT
    diffs = [1, 15, 10, 4, 6]
    fill = f"""v_mul_f32 v{vF}, s{sF}, v{vDT}
    v_and_b32 v{vJ}, 31, v{L}
    v_lshlrev_b32 v{vJ}, 2, v{vJ}
    v_lshlrev_b32 v{vH128}, 7, v{vH}
    s_lshl_b32 s46, s{sD}, 12
    s_add_u32 s46, s46, {WS_KT}""".split("\n")
    fill += [f"v_mad_u32_u24 v{TW+i}, v{vH128}, {d}, v{vJ}" for i, d in enumerate(diffs)]
    for l in vwr(): c(l)
    mm(1, fill)
    rowmap = [0,4,2,6,1,5,3,7,17,10,9,11,18,25,19,26,20,21,22,23,24,27,28,29]
    for r in range(12):
        i0_ = (r&3) + 8*(r>>2)
        d = rowmap[i0_+4] - rowmap[i0_]
        c(f"v_mul_f32 v{D+r}, v{D+r}, v{vF}")
        c(f"buffer_store_dword v{D+r}, v{TW+diffs.index(d)}, s[{WS}:{WS+3}], s46 offen offset:{rowmap[i0_]*128} {ST}")

CW = 4*KR_ROW + 512 + 4096
LRING = 4*CW
LZX = LRING + 65536
LCNT = LZX + 512
LDS2 = LCNT + 64

def gen_k2(cfg):
    name = "k2_kernel"
    a = Asm()
    kernel_head(a, name)
    WS = 8
    sW = 31
    L = 0
    a(f"""
    s_cmp_ge_u32 s2, 256
    s_cbranch_scc1 L_k2_end
    s_load_dwordx2 s[4:5], s[0:1], {KA_WS}
    v_lshrrev_b32 v1, 6, v0
    v_and_b32 v0, 63, v0
    v_readfirstlane_b32 s{sW}, v1
    s_cmp_ge_u32 s{sW}, 4
    s_cbranch_scc1 L_k2_o
    """)
    hiC = gen_k2_c(a, cfg, WS, sW)
    a("L_k2_o:")
    hiO = gen_k2_o(a, cfg, WS, sW)
    a("L_k2_end:\ns_endpgm")
    a.lines = fix_hazards(a.lines)
    return a.text(), kernel_desc(name, 256 if cfg.get("stamp") else max(hiC, hiO)), f"; @launch kernel={name} grid=(256,1,1) block=(512,1,1) lds={LDS2}"

def gen_k2_c(c, cfg, WS, sW):
    L = 0
    DS = 12
    sD = 32; sLB = 33
    R = Regs(1, 254)
    vT = R.alloc("t", 12, 2)
    v16 = R.alloc("l16"); vD = R.alloc("dsk", 2, 2)
    aA = R.alloc("aA"); aB = R.alloc("aB"); vO = R.alloc("vo")
    m0 = R.mark()
    c(f"""
    s_load_dwordx2 s[6:7], s[0:1], {KA_DSK}
    s_load_dwordx2 s[20:21], s[0:1], {KA_WO}
    s_lshl_b32 s{sD}, s2, 2
    s_add_u32 s{sD}, s{sD}, s{sW}
    s_mul_i32 s{sLB}, s{sW}, {CW}
    v_lshlrev_b32 v{v16}, 4, v{L}
    s_lshl_b32 s47, s{sD}, 1
    v_mov_b32 v{vT+2}, 0
    v_mov_b32 v{vT+3}, 0
    s_lshl_b32 s34, s{sD}, 12
    s_add_u32 s35, s34, {WS_KT}
    s_add_u32 s34, s34, {WS_XT}
    s_mov_b32 m0, s{sLB}
    s_waitcnt lgkmcnt(0)
    """)
    srd(c, WS, 4, WS_SIZE)
    srd(c, DS, 6, 2048)
    stamp(c, cfg, 32)
    if cfg.get("stamp"): c(f"s_mov_b32 m0, s{sLB}")
    for i in range(4):
        c(f"buffer_load_dwordx4 v{v16}, s[{WS}:{WS+3}], s35 offen offset:{i*1024} lds")
    c(f"s_add_u32 m0, s{sLB}, {4*KR_ROW+512}")
    for i in range(4):
        c(f"buffer_load_dwordx4 v{v16}, s[{WS}:{WS+3}], s34 offen offset:{i*1024} lds")
    c(f"""
    buffer_load_ushort v{vD}, v{vT+2}, s[{DS}:{DS+3}], s47 offen
    v_lshlrev_b32 v{vT+4}, 3, v{L}
    v_add_u32 v{vT+4}, s{sLB}, v{vT+4}
    ds_write_b64 v{vT+4}, {vr(vT+2,2)} offset:{4*KR_ROW}
    s_bfe_u32 s40, s2, 0x10002
    s_lshl_b32 s40, s40, 3
    s_lshr_b32 s41, s2, 5
    s_add_u32 s40, s40, s41
    s_lshl_b32 s40, s40, 7
    s_lshl_b32 s41, s{sW}, 12
    s_add_u32 s41, s41, {LRING}
    s_lshl_b32 s38, s{sW}, 5
    v_lshrrev_b32 v{vT+4}, 3, v{L}
    v_add_u32 v{vT+4}, s38, v{vT+4}
    v_lshlrev_b32 v{vT+4}, 11, v{vT+4}
    v_and_b32 v{vT+5}, 7, v{L}
    v_bfe_u32 v{vT+6}, v{L}, 4, 1
    v_lshlrev_b32 v{vT+6}, 2, v{vT+6}
    v_xor_b32 v{vT+5}, v{vT+5}, v{vT+6}
    v_lshl_add_u32 v{vT+4}, v{vT+5}, 4, v{vT+4}
    s_barrier
    """)
    WO = 16
    srd(c, WO, 20, 1024*1024*2)
    NWC = 0
    for ck in range(NWC):
        c(f"s_add_u32 m0, s41, {ck*16384}")
        for i in range(4):
            c(f"s_add_u32 s43, s40, {ck*128*2048 + i*(8*2048-1024)}")
            c(f"buffer_load_dwordx4 v{vT+4}, s[{WO}:{WO+3}], s43 offen offset:{i*1024} lds")
    vH = R.alloc("half")
    FR = R.alloc("fr", 32, 4)
    c(f"""
    v_lshrrev_b32 v{vH}, 5, v{L}
    v_and_b32 v{vT+2}, 3, v{L}
    v_xor_b32 v{vT+2}, 3, v{vT+2}
    v_mul_u32_u24 v{vT+2}, {KR_ROW}, v{vT+2}
    v_and_b32 v{vT+3}, 12, v{L}
    v_lshlrev_b32 v{vT+3}, 1, v{vT+3}
    v_sub_u32 v{vT+2}, v{vT+2}, v{vT+3}
    v_lshrrev_b32 v{vT+4}, 4, v{L}
    v_lshl_add_u32 v{vT+2}, v{vT+4}, 4, v{vT+2}
    s_add_u32 s36, s{sLB}, {2*2028-3584}
    v_add_u32 v{aA}, s36, v{vT+2}
    v_and_b32 v{vT+3}, 15, v{L}
    v_lshlrev_b32 v{vT+3}, 5, v{vT+3}
    v_lshl_add_u32 v{vT+5}, v{vT+4}, 4, v{vT+3}
    s_add_u32 s36, s{sLB}, {4*KR_ROW+512-32}
    v_add_u32 v{aB}, s36, v{vT+5}
    v_lshl_add_u32 v{vO}, v{vT+4}, 3, v{vT+3}
    """)
    vJ = vT+10; vH128 = vT+11
    c(f"""
    v_and_b32 v{vJ}, 31, v{L}
    v_lshlrev_b32 v{vJ}, 2, v{vJ}
    v_add_u32 v{vJ}, s{sLB}, v{vJ}
    v_lshlrev_b32 v{vH128}, 7, v{vH}
    s_waitcnt vmcnt({5+4*NWC})
    """)
    stamp(c, cfg, 1)
    K = FR
    rows1 = [17,17,9,10,10,10,11,17]
    vJ4 = vT+7
    c(f"v_lshl_add_u32 v{vJ4}, v{vH}, 2, v{vJ}")
    for e in range(8):
        base = vJ4 if e >= 7 else vJ
        c(f"v_mad_u32_u24 v{vT+(e&3)}, v{vH128}, {rows1[e]-e}, v{base}")
        c(f"ds_read_b32 v{K+e}, v{vT+(e&3)} offset:{e*128}")
    vLl = vT+6
    c(f"""
    v_lshlrev_b32 v{vLl}, 2, v{L}
    v_add_u32 v{vLl}, s{sLB}, v{vLl}
    v_add_u32 v{vT}, {18*128}, v{vLl}
    v_add_u32 v{vT+1}, {20*128}, v{vLl}
    ds_read2_b32 {vr(K+10,2)}, v{vT} offset0:0 offset1:1
    ds_read_b32 v{K+12}, v{vLl} offset:{25*128}
    ds_read2_b32 {vr(K+14,2)}, v{vT+1} offset0:0 offset1:1
    ds_read2_b32 {vr(K+16,2)}, v{vT+1} offset0:64 offset1:65
    v_and_b32 v{vT+2}, 1, v{L}
    v_cmp_eq_u32 vcc, 1, v{vT+2}
    v_sub_u32 v{vT+3}, 63, v{L}
    v_lshlrev_b32 v{vT+3}, 4, v{vT+3}
    v_add_u32 v{vT+3}, s{sLB}, v{vT+3}
    v_lshrrev_b32 v{vT+4}, 2, v{L}
    v_mul_u32_u24 v{vT+4}, {KR_ROW}, v{vT+4}
    v_and_b32 v{vT+5}, 3, v{L}
    v_lshl_add_u32 v{vT+4}, v{vT+5}, 3, v{vT+4}
    v_add_u32 v{vT+4}, s{sLB}, v{vT+4}
    v_mov_b32 v{K+20}, 0
    v_mov_b32 v{K+21}, 0
    s_mov_b32 s46, 0
    s_mov_b32 s47, 0
    s_waitcnt lgkmcnt(0)
    s_mov_b64 exec, 0xffff
    ds_write_b64 v{vT+4}, {vr(K+20,2)} offset:4096
    s_mov_b64 exec, -1
    v_cndmask_b32 v{K+18}, v{K+14}, v{K+15}, vcc
    v_cndmask_b32 v{K+19}, v{K+16}, v{K+17}, vcc
    """)
    Q = R.alloc("q", 32, 4)
    W5 = R.alloc("w5", 2)
    def emit_chunk(k, ci):
        q = Q + 16*(ci & 1); c0, c1, c2, c3 = q, q+4, q+8, q+12; w5 = W5 + (ci & 1)
        for d in range(4): c(f"v_cvt_pk_bf16_f32 v{c0+d}, v{k[7-2*d]}, v{k[6-2*d]}")
        c(f"v_mov_b32 v{c2+3}, s46\nv_mov_b32 v{w5}, s47")
        for d in range(3): c(f"v_cvt_pk_bf16_f32 v{c2+d}, v{k[5-2*d]}, v{k[4-2*d]}")
        c(f"v_mov_b32_dpp v{c2+3}, v{c0} wave_shr:1 row_mask:0xf bank_mask:0xf")
        c(f"v_mov_b32_dpp v{w5}, v{c0+1} wave_shr:1 row_mask:0xf bank_mask:0xf")
        c(f"v_readlane_b32 s46, v{c0}, 63\nv_readlane_b32 s47, v{c0+1}, 63")
        for d in range(3): c(f"v_cvt_pk_bf16_f32 v{c1+d}, v{k[6-2*d]}, v{k[5-2*d]}")
        for d in range(2): c(f"v_cvt_pk_bf16_f32 v{c3+d}, v{k[4-2*d]}, v{k[3-2*d]}")
        c(f"v_alignbit_b32 v{c1+3}, v{c2+3}, v{c0+3}, 16")
        c(f"v_alignbit_b32 v{c3+2}, v{c2+3}, v{c0+3}, 16")
        c(f"v_alignbit_b32 v{c3+3}, v{w5}, v{c2+3}, 16")
        for cp in range(4):
            c(f"ds_write_b128 v{vT+3}, {vr(q+4*cp,4)} offset:{cp*KR_ROW + 1024*(3-ci)}")
    emit_chunk([K+e for e in range(8)], 0)
    A_, C_, B_ = K+10, K+11, K+12
    emit_chunk([A_,A_,A_,B_,B_,B_,C_,C_], 1)
    for ci in (2, 3):
        A_, B_, M_ = K+14+2*(ci-2), K+15+2*(ci-2), K+18+(ci-2)
        emit_chunk([A_,A_,A_,A_,M_,B_,B_,B_], ci)
    hi1 = R.hi
    R.release(m0)
    ACC = R.alloc("acc", 32, 4)
    SA = [R.alloc("a0", 32, 4), R.alloc("a1", 32, 4)]
    SB = [R.alloc("b0", 32, 4), R.alloc("b1", 32, 4)]
    c("s_waitcnt vmcnt(0) lgkmcnt(0)\ns_setprio 2")
    stamp(c, cfg, 2)
    def reads(st):
        g = []
        for k in range(8):
            g.append(f"ds_read_b128 {vr(SB[st]+4*k,4)}, v{aB} offset:{512*k}")
            g.append(f"ds_read_b64 {vr(SA[st]+4*k,2)}, v{aA} offset:{(7-k)*512}")
            g.append(f"ds_read_b64 {vr(SA[st]+4*k+2,2)}, v{aA} offset:{(7-k)*512+8}")
        return g
    def mf(st, first):
        g = []; seen = set()
        pairs = sorted([(t1, dl) for t1 in range(8) for dl in range(8) if t1+dl < 8], key=lambda p: (max(p), p))
        for t1, dl in pairs:
            nu = t1 + dl
            cc = "0" if (first and nu not in seen) else vr(ACC+4*nu,4)
            seen.add(nu)
            g.append(f"v_mfma_f32_16x16x32_bf16 {vr(ACC+4*nu,4)}, {vr(SA[st]+4*t1,4)}, {vr(SB[st]+4*dl,4)}, {cc}")
        return g
    for l in reads(0): c(l)
    for t0 in range(8):
        st = t0 & 1
        rl = []
        if t0 < 7:
            c(f"v_subrev_u32 v{aA}, 64, v{aA}\nv_subrev_u32 v{aB}, 64, v{aB}")
            rl = reads(st ^ 1)
        c("s_waitcnt lgkmcnt(0)")
        for i, m in enumerate(mf(st, t0 == 0)):
            c(m)
            if rl: c(rl.pop(0))
    stamp(c, cfg, 3)
    U = SA[0]
    c(f"s_add_u32 s36, s{sLB}, {4*KR_ROW+512}\nv_add_u32 v{vT+5}, s36, v{vO}")
    for nu in range(8):
        c(f"ds_read_b64 {vr(U+2*nu,2)}, v{vT+5} offset:{512*nu}")
    c(f"""
    v_lshlrev_b32 v{vD}, 16, v{vD}
    s_lshl_b32 s34, s{sD}, 12
    s_add_u32 s34, s34, {WS_BT}
    """)
    E = SB[0]
    for nu in range(8):
        c(f"s_waitcnt lgkmcnt({7-nu})")
        e = E + 4*(nu & 3)
        for p in range(2):
            c(f"v_lshlrev_b32 v{e+2*p}, 16, v{U+2*nu+p}\nv_and_b32 v{e+2*p+1}, 0xffff0000, v{U+2*nu+p}")
        for p in range(4):
            c(f"v_fma_f32 v{e+p}, v{e+p}, v{vD}, v{ACC+4*nu+p}")
        for p in range(2):
            c(f"v_cvt_pk_bf16_f32 v{U+2*nu+p}, v{e+2*p}, v{e+2*p+1}")
        c(f"buffer_store_dwordx2 {vr(U+2*nu,2)}, v{vO}, s[{WS}:{WS+3}], s34 offen offset:{512*nu} sc1")
    c(f"""
    v_mov_b32 v{vT}, 1
    v_mov_b32 v{vT+1}, 0
    s_lshl_b32 s34, s{sD}, 2
    s_add_u32 s34, s34, {WS_FB}
    s_waitcnt vmcnt(0)
    s_mov_b64 exec, 1
    buffer_store_dword v{vT}, v{vT+1}, s[{WS}:{WS+3}], s34 offen sc1
    """)
    stamp_out(c, cfg, 1, WS, sW)
    c("s_endpgm")
    return max(hi1, R.hi)

def gen_k2_o(a, cfg, WS, sW):
    L = 0
    WO = 12; OUTS = 16
    sB = 32; sH = 33; sC = 34; sM = 50; sN = 51; sTgt = 52
    R = Regs(1, 254)
    vT = R.alloc("t", 8, 2); v16 = R.alloc("l16"); vZ = R.alloc("vz")
    vDW = R.alloc("dw"); aW = R.alloc("aw", 2); vG = R.alloc("g", 4, 2)
    vCnt = R.alloc("cnt"); vOne = R.alloc("one"); vPoll = R.alloc("poll"); vFl = R.alloc("fl")
    vHR = R.alloc("hr"); vHh = R.alloc("hh"); v4 = R.alloc("l4")
    mk = R.mark()
    P = R.alloc("p", 16, 4); Z = R.alloc("z", 16, 4)
    PQ = R.alloc("pq", 16, 4)
    KVF = R.alloc("kvf", 8, 4); ZF = R.alloc("zf", 8, 4)
    NUM = [R.alloc("n0", 16, 4), R.alloc("n1", 16, 4)]; DEN = [R.alloc("d0", 16, 4), R.alloc("d1", 16, 4)]
    a(f"""
    s_setprio 3
    s_load_dwordx2 s[6:7], s[0:1], {KA_WO}
    s_load_dwordx2 s[20:21], s[0:1], {KA_OUT}
    s_load_dwordx2 s[22:23], s[0:1], {KA_X}
    s_load_dwordx2 s[24:25], s[0:1], {KA_GW}
    s_sub_u32 s{sB}, s{sW}, 4
    s_and_b32 s{sH}, s2, 31
    s_lshr_b32 s{sC}, s2, 5
    v_lshlrev_b32 v{v16}, 4, v{L}
    v_lshlrev_b32 v{v4}, 2, v{L}
    v_lshrrev_b32 v{vHh}, 5, v{L}
    v_lshlrev_b32 v{vZ}, 4, v{vHh}
    s_lshl_b32 s38, s{sH}, 12
    s_add_u32 s38, s38, {WS_KVS}
    s_lshl_b32 s37, s{sH}, 7
    s_add_u32 s37, s37, {WS_ZS}
    s_lshl_b32 s35, s{sC}, 3
    s_lshl_b32 s36, s{sB}, 1
    s_add_u32 s35, s35, s36
    s_lshl_b32 s35, s35, 5
    s_add_u32 s35, s35, s{sH}
    s_lshl_b32 s35, s35, 11
    s_add_u32 s36, s35, {32*2048}
    v_mov_b32 v{vCnt}, {LCNT}
    v_mov_b32 v{vOne}, 0
    ds_write_b32 v{vCnt}, v{vOne}
    s_waitcnt lgkmcnt(0)
    """)
    srd(a, WS, 4, WS_SIZE)
    stamp(a, cfg, 32)
    for q in range(4):
        a(f"buffer_load_dwordx4 {vr(Z+4*q,4)}, v{vZ}, s[{WS}:{WS+3}], s37 offen offset:{q*32}")
    for t in range(2):
        for f in range(2):
            a(f"buffer_load_dwordx4 {vr(PQ+8*t+4*f,4)}, v{v16}, s[{WS}:{WS+3}], s{35+t} offen offset:{f*1024}")
    for r in range(16):
        a(f"buffer_load_dword v{P+r}, v{v4}, s[{WS}:{WS+3}], s38 offen offset:{r*256}")
    XS = 56; GS = 60
    GX = R.alloc("gx", 16, 4); GW = R.alloc("gw", 8, 4)
    srd(a, XS, 22, 2048*1024*2)
    srd(a, GS, 24, 2048)
    a(f"""
    s_lshl_b32 s64, s{sC}, 2
    s_add_u32 s64, s64, s{sB}
    s_lshl_b32 s64, s64, 6
    s_lshl_b32 s65, s{sH}, 1
    s_add_u32 s64, s64, s65
    s_lshl_b32 s65, s64, 11
    """)
    for r in range(2):
        for h in range(2):
            a(f"buffer_load_dwordx4 {vr(GX+8*r+4*h,4)}, v{v16}, s[{XS}:{XS+3}], s65 offen offset:{2048*r+1024*h}")
    for h in range(2):
        a(f"buffer_load_dwordx4 {vr(GW+4*h,4)}, v{v16}, s[{GS}:{GS+3}], 0 offen offset:{1024*h}")
    a("s_barrier")
    srd(a, WO, 6, 1024*1024*2)
    srd(a, OUTS, 20, 2048*1024*2)
    a(f"""
    v_mov_b32 v{vOne}, 1
    s_mov_b32 s70, 0x07060302
    s_mov_b32 s{sTgt}, 0
    s_and_b32 s38, s2, 7
    s_lshr_b32 s39, s2, 3
    s_and_b32 s{sM}, s38, 3
    s_lshl_b32 s{sM}, s{sM}, 2
    s_and_b32 s40, s39, 3
    s_add_u32 s{sM}, s{sM}, s40
    s_lshr_b32 s{sN}, s38, 2
    s_lshl_b32 s{sN}, s{sN}, 3
    s_lshr_b32 s40, s39, 2
    s_add_u32 s{sN}, s{sN}, s40
    s_lshl_b32 s38, s{sB}, 5
    v_lshrrev_b32 v{vT}, 3, v{L}
    v_add_u32 v{vT}, s38, v{vT}
    v_lshlrev_b32 v{vT}, 11, v{vT}
    v_and_b32 v{vT+1}, 7, v{L}
    v_bfe_u32 v{vT+2}, v{L}, 4, 1
    v_lshlrev_b32 v{vT+2}, 2, v{vT+2}
    v_xor_b32 v{vT+1}, v{vT+1}, v{vT+2}
    v_lshl_add_u32 v{vDW}, v{vT+1}, 4, v{vT}
    s_lshl_b32 s40, s{sN}, 7
    s_lshl_b32 s41, s{sB}, 12
    s_add_u32 s41, s41, {LRING}
    s_lshl_b32 s42, s{sM}, 2
    s_add_u32 s42, s42, s{sB}
    s_lshl_b32 s42, s42, 16
    s_add_u32 s42, s42, {WS_OF}
    v_and_b32 v{vT+1}, 31, v{L}
    v_lshlrev_b32 v{vFl}, 2, v{vT+1}
    v_bfe_u32 v{vT+2}, v{L}, 2, 2
    v_lshl_add_u32 v{vHR}, v{vHh}, 2, v{vT+2}
    v_bfe_u32 v{vT+4}, v{L}, 4, 1
    v_lshlrev_b32 v{vT+4}, 1, v{vT+4}
    v_bfe_u32 v{vT+6}, v{L}, 1, 1
    v_add_u32 v{vT+4}, v{vT+4}, v{vT+6}
    v_bfe_u32 v{vT+6}, v{L}, 3, 1
    v_lshlrev_b32 v{vT+6}, 2, v{vT+6}
    v_xor_b32 v{vT+4}, v{vT+4}, v{vT+6}
    v_lshlrev_b32 v{vT+4}, 4, v{vT+4}
    v_lshl_add_u32 v{vT+4}, v{vHR}, 7, v{vT+4}
    v_and_b32 v{vT+6}, 1, v{L}
    v_lshl_add_u32 v{aW}, v{vT+6}, 3, v{vT+4}
    v_xor_b32 v{aW+1}, 64, v{aW}
    v_add_u32 v{aW}, {LRING}, v{aW}
    v_add_u32 v{aW+1}, {LRING}, v{aW+1}
    s_add_u32 s35, s35, {WS_OF}
    s_add_u32 s36, s36, {WS_OF}
    """)
    def dma_chunk(c):
        g = []
        for i in range(4):
            pre = f"s_add_u32 m0, s41, {(c%4)*16384}\n" if i == 0 else ""
            g.append(pre + f"s_add_u32 s43, s40, {c*128*2048 + i*(8*2048-1024)}\n" +
                     f"buffer_load_dwordx4 v{vDW}, s[{WO}:{WO+3}], s43 offen offset:{i*1024} lds")
        return g
    nl = [0]
    def lbar():
        n = nl[0]; nl[0] += 1
        a(f"""
        s_add_u32 s{sTgt}, s{sTgt}, 4
        s_mov_b64 exec, 1
        ds_add_u32 v{vCnt}, v{vOne}
        s_mov_b64 exec, -1
        L_k2_lb{n}:
        ds_read_b32 v{vPoll}, v{vCnt}
        s_waitcnt lgkmcnt(0)
        v_readfirstlane_b32 s54, v{vPoll}
        s_cmp_lt_u32 s54, s{sTgt}
        s_cbranch_scc1 L_k2_lb{n}
        """)
    a(f"s_waitcnt vmcnt(22)")
    stamp(a, cfg, 0)
    for i in range(8): a(f"v_cvt_pk_bf16_f32 v{ZF+i}, v{Z+2*i}, v{Z+2*i+1}")
    for t in range(2):
        for f in range(2):
            c = "0" if f == 0 else vr(DEN[t],16)
            a(f"v_mfma_f32_32x32x16_bf16 {vr(DEN[t],16)}, {vr(ZF+4*f,4)}, {vr(PQ+8*t+4*f,4)}, {c}")
    a(f"s_waitcnt vmcnt(6)")
    for i in range(8): a(f"v_cvt_pk_bf16_f32 v{KVF+i}, v{P+2*i}, v{P+2*i+1}")
    for t in range(2):
        for f in range(2):
            c = "0" if f == 0 else vr(NUM[t],16)
            a(f"v_mfma_f32_32x32x16_bf16 {vr(NUM[t],16)}, {vr(KVF+4*f,4)}, {vr(PQ+8*t+4*f,4)}, {c}")
    for t in range(2):
        r = vT + 2 + t
        a(f"v_add_f32 v{r}, {EPS}, v{DEN[t]}\nv_rcp_f32 v{r}, v{r}")
    for t in range(2):
        r = vT + 2 + t
        for f in range(2):
            for i in range(8):
                a(f"v_mul_f32 v{NUM[t]+8*f+i}, v{NUM[t]+8*f+i}, v{r}")
            for i in range(4):
                a(f"v_cvt_pk_bf16_f32 v{PQ+8*t+4*f+i}, v{NUM[t]+8*f+2*i}, v{NUM[t]+8*f+2*i+1}")
            a(f"v_perm_b32 v{PQ+8*t+4*f}, v{PQ+8*t+4*f}, v{NUM[t]+8*f}, s70\nv_or_b32 v{PQ+8*t+4*f}, 1, v{PQ+8*t+4*f}")
            a(f"buffer_store_dwordx4 {vr(PQ+8*t+4*f,4)}, v{v16}, s[{WS}:{WS+3}], s{35+t} offen offset:{f*1024} sc1")
    stamp(a, cfg, 1)
    GA = R.alloc("ga", 2, 2); ON = R.alloc("on"); GT = R.alloc("gt", 6, 2)
    a(f"v_mov_b32 v{GA}, 0\nv_mov_b32 v{GA+1}, 0\nv_mov_b32 v{ON}, 0x3f803f80\ns_waitcnt vmcnt(4)")
    for c in range(4):
        for g in dma_chunk(c): a(g)
    for i in range(8):
        wl, wh = GT, GT+1
        a(f"v_lshlrev_b32 v{wl}, 16, v{GW+i}\nv_and_b32 v{wh}, 0xffff0000, v{GW+i}")
        for r in range(2):
            xl, xh = GT+2+2*r, GT+3+2*r
            a(f"v_lshlrev_b32 v{xl}, 16, v{GX+8*r+i}\nv_and_b32 v{xh}, 0xffff0000, v{GX+8*r+i}")
            a(f"v_mul_f32 v{xl}, v{xl}, v{wl}\nv_mul_f32 v{xh}, v{xh}, v{wh}")
        for r in range(2):
            a(f"v_cvt_pk_bf16_f32 v{GT+2+2*r}, v{GT+2+2*r}, v{GT+3+2*r}")
        for r in range(2):
            xl, xh = GT+2+2*r, GT+3+2*r
            a(f"v_and_b32 v{xh}, 0xffff0000, v{xl}\nv_lshlrev_b32 v{xl}, 16, v{xl}")
            a(f"v_add_f32 v{GA+r}, v{GA+r}, v{xh}\nv_add_f32 v{GA+r}, v{GA+r}, v{xl}")
    a(f"v_mov_b32 v{vT}, 0")
    for dp in ("quad_perm:[1,0,3,2] row_mask:0xf", "quad_perm:[2,3,0,1] row_mask:0xf", "row_half_mirror row_mask:0xf", "row_mirror row_mask:0xf",
               "row_bcast:15 row_mask:0xa", "row_bcast:31 row_mask:0xc"):
        for r in range(2):
            a(f"v_add_f32_dpp v{GA+r}, v{GA+r}, v{GA+r} {dp} bank_mask:0xf")
    x, y = GA, GA+1
    a(f"""
    v_cvt_pk_bf16_f32 v{x}, v{x}, v{y}
    v_and_b32 v{y}, 0xffff0000, v{x}
    v_lshlrev_b32 v{x}, 16, v{x}
    v_mul_f32 v{x}, 0xbfb8aa3b, v{x}
    v_mul_f32 v{y}, 0xbfb8aa3b, v{y}
    v_exp_f32 v{x}, v{x}
    v_exp_f32 v{y}, v{y}
    v_add_f32 v{x}, 1.0, v{x}
    v_add_f32 v{y}, 1.0, v{y}
    v_rcp_f32 v{x}, v{x}
    v_rcp_f32 v{y}, v{y}
    v_cvt_pk_bf16_f32 v{x}, v{x}, v{y}
    v_and_b32 v{y}, 0xffff0000, v{x}
    v_lshlrev_b32 v{x}, 16, v{x}
    s_lshl_b32 s64, s64, 2
    s_add_u32 s64, s64, {WS_G}
    s_mov_b32 exec_lo, 0
    s_mov_b32 exec_hi, 0x80000000
    buffer_store_dwordx2 {vr(GA,2)}, v{vT}, s[{WS}:{WS+3}], s64 offen sc1
    s_mov_b64 exec, -1
    """)
    def poll(tag, voff, soff, minv):
        a(f"""
        s_mov_b32 s55, 0
        L_k2_poll{tag}:
        buffer_load_dword v{vPoll}, v{voff}, s[{WS}:{WS+3}], s{soff} offen sc1
        s_add_u32 s55, s55, 1
        s_waitcnt vmcnt(0)
        v_cmp_gt_u32 vcc, {minv}, v{vPoll}
        s_cmp_gt_u32 s55, 0x40000
        s_cbranch_scc1 L_k2_pd{tag}
        s_cbranch_vccz L_k2_pd{tag}
        s_sleep 1
        s_branch L_k2_poll{tag}
        L_k2_pd{tag}:
        """)
    stamp(a, cfg, 2)
    R.release(mk)
    ACC = R.alloc("acc", 32, 4)
    NR = cfg["NR"]
    OF = R.alloc("of", 32*NR, 4)
    WF = [R.alloc("wf0", 16, 4), R.alloc("wf1", 16, 4), R.alloc("wf2", 16, 4)]
    BF = WF[0]
    vSen = R.alloc("sen"); vChk = R.alloc("chk"); vFb = R.alloc("fbv")
    def o_load(c, j):
        pre = f"s_add_u32 s44, s42, {c*8192 + (j//4)*4096}\n" if j % 4 == 0 else ""
        return pre + f"buffer_load_dwordx4 {vr(OF+32*(c%NR)+4*j,4)}, v{v16}, s[{WS}:{WS+3}], s44 offen offset:{(j%4)*1024} sc1"
    def chk(c, extra=None):
        b = OF + 32*(c % NR)
        l = [f"v_bitop3_b32 v{vChk}, v{b}, v{b+4}, v{b+8} bitop3:0x80", f"v_bitop3_b32 v{vChk}, v{vChk}, v{b+12}, v{b+16} bitop3:0x80",
             f"v_bitop3_b32 v{vChk}, v{vChk}, v{b+20}, v{b+24} bitop3:0x80", f"v_bitop3_b32 v{vChk}, v{vChk}, v{b+28}, 1 bitop3:0x80"]
        if extra: l.append(f"v_and_b32 v{vChk}, v{vChk}, v{extra}")
        l.append(f"v_cmp_eq_u32 vcc, 0, v{vChk}")
        return "\n".join(l)
    a(f"""
    v_lshlrev_b32 v{vSen}, 10, v{L}
    v_add_u32 v{vSen}, 1008, v{vSen}
    s_mov_b32 s55, 0
    L_k2_po:
    buffer_load_dword v{vPoll}, v{vSen}, s[{WS}:{WS+3}], s42 offen sc1
    """)
    for j in range(8): a(o_load(0, j))
    a(f"""
    s_add_u32 s55, s55, 1
    s_waitcnt vmcnt(0)
    {chk(0, vPoll)}
    s_cmp_gt_u32 s55, 0x20000
    s_cbranch_scc1 L_k2_pod
    s_cbranch_vccz L_k2_pod
    s_sleep 1
    s_branch L_k2_po
    L_k2_pod:
    """)
    stamp(a, cfg, 3)
    for c in range(1, NR):
        for j in range(8): a(o_load(c, j))
    def wreads(st, ks):
        g = []
        for u in range(2):
            for nt in range(2):
                for hf in range(2):
                    off = ((ks+u) % 32)*2048 + hf*1024
                    g.append(f"ds_read_b64_tr_b16 {vr(WF[st]+8*u+4*nt+2*hf,2)}, v{aW+nt} offset:{off}")
        return g
    NWC = cfg.get("NWC", 4)
    vBt = R.alloc("bt"); vBr = R.alloc("br"); vOo = R.alloc("oo")
    a(f"""
    v_lshrrev_b32 v{vBt}, 2, v{L}
    v_lshlrev_b32 v{vBt}, 12, v{vBt}
    v_and_b32 v{vT+1}, 3, v{L}
    v_lshl_add_u32 v{vBt}, v{vT+1}, 4, v{vBt}
    s_lshl_b32 s66, s{sN}, 18
    s_lshl_b32 s46, s{sM}, 8
    s_add_u32 s66, s66, s46
    s_lshl_b32 s46, s{sB}, 6
    s_add_u32 s66, s66, s46
    s_add_u32 s66, s66, {WS_BT}
    s_lshl_b32 s67, s{sM}, 9
    s_lshl_b32 s46, s{sB}, 7
    s_add_u32 s67, s67, s46
    s_add_u32 s67, s67, {WS_G}
    s_lshl_b32 s53, s{sN}, 8
    s_add_u32 s53, s53, {WS_FB}
    v_lshlrev_b32 v{vBr}, 6, v{vHR}
    v_bfe_u32 v{vT+4}, v{L}, 4, 1
    v_lshl_add_u32 v{vBr}, v{vT+4}, 5, v{vBr}
    v_lshl_add_u32 v{vBr}, v{vT+1}, 3, v{vBr}
    v_add_u32 v{vBr}, s41, v{vBr}
    v_and_b32 v{vOo}, 31, v{L}
    v_lshlrev_b32 v{vOo}, 11, v{vOo}
    v_lshl_add_u32 v{vOo}, v{vHh}, 4, v{vOo}
    s_lshl_b32 s68, s{sM}, 18
    s_lshl_b32 s46, s{sB}, 16
    s_add_u32 s68, s68, s46
    s_add_u32 s68, s68, s40
    s_mov_b32 s69, 0
    """)
    def b_dma():
        l = ["s_mov_b32 m0, s41\ns_mov_b32 s45, s66"]
        for i in range(4):
            l.append(f"buffer_load_dwordx4 v{vBt}, s[{WS}:{WS+3}], s45 offen offset:{i*1024} sc1 lds\ns_add_u32 s45, s45, {16*4096-1024}")
        return "\n".join(l)
    Q = []
    for c in range(1, NR): Q += [("o", c)]*8
    LQ = []
    def vwait(pred):
        nonlocal Q
        idx = [i for i, t in enumerate(Q) if pred(t)]
        if idx:
            last = max(idx); a(f"s_waitcnt vmcnt({len(Q)-1-last})"); Q = Q[last+1:]
    def lwait(tag):
        nonlocal LQ
        idx = [i for i, t in enumerate(LQ) if t == tag]
        if idx:
            last = max(idx); a(f"s_waitcnt lgkmcnt({min(15, len(LQ)-1-last)})"); LQ = LQ[last+1:]
    def arrive():
        a(f"""
        s_add_u32 s{sTgt}, s{sTgt}, 4
        s_mov_b64 exec, 1
        ds_add_u32 v{vCnt}, v{vOne}
        s_mov_b64 exec, -1
        """); LQ.append("x")
    def pollrd():
        a(f"ds_read_b32 v{vPoll}, v{vCnt}"); LQ.append("p")
    ncb = [0]
    def check():
        n = ncb[0]; ncb[0] += 1
        lwait("p")
        a(f"""
        v_readfirstlane_b32 s54, v{vPoll}
        s_cmp_ge_u32 s54, s{sTgt}
        s_cbranch_scc1 L_k2_cb{n}
        L_k2_cr{n}:
        ds_read_b32 v{vPoll}, v{vCnt}
        s_waitcnt lgkmcnt(0)
        v_readfirstlane_b32 s54, v{vPoll}
        s_cmp_lt_u32 s54, s{sTgt}
        s_cbranch_scc1 L_k2_cr{n}
        L_k2_cb{n}:
        """)
    def ocheck(c):
        vwait(lambda t: t == ("o", c))
        a(f"""
        {chk(c)}
        s_mov_b32 s55, 0
        s_cbranch_vccz L_k2_ok{c}
        L_k2_rt{c}:
        """)
        for j in range(8): a(o_load(c, j))
        a(f"""
        s_add_u32 s55, s55, 1
        s_waitcnt vmcnt(0)
        {chk(c)}
        s_cmp_gt_u32 s55, 0x20000
        s_cbranch_scc1 L_k2_ok{c}
        s_cbranch_vccnz L_k2_rt{c}
        L_k2_ok{c}:
        """)
    lbar()
    def issue_reads(g):
        return [(l, ("r", g)) for l in wreads(g % 3, 2*g)]
    for g in range(2):
        for l, t in issue_reads(g): a(l); LQ.append(t)
    HP = cfg.get("HP", 0)
    if HP == 0: a("s_setprio 0")
    for c in range(8):
        stamp(a, cfg, 4+c)
        if cfg.get("stamp"): LQ = []
        if c == HP and HP > 0: a("s_setprio 0")
        dm = []
        for pr in range(4):
            g = 4*c + pr
            if pr == 1 and 1 <= c <= 4:
                check()
                dm = dma_chunk(c+3)
            if pr == 1 and 3 <= c <= 6:
                vwait(lambda t: t == ("w", c+1))
                arrive()
            if pr == 2 and 3 <= c <= 6:
                check()
            if pr == 3 and c < 7:
                ocheck(c+1)
            if c == 7 and pr == 0:
                vwait(lambda t: t == ("f", 7))
                a(f"""
                v_cmp_gt_u32 vcc, 1, v{vFb}
                s_nop 1
                s_cbranch_vccnz L_k2_nob
                {b_dma()}
                s_mov_b32 s69, 1
                L_k2_nob:
                """)
            rl = issue_reads(g+2) if g + 2 < 32 else []
            lwait(("r", g))
            if pr == 3 and c <= 3:
                arrive()
            k = 0
            for u in range(2):
                j = 2*pr + u
                for nt in range(2):
                    cc = "0" if (c == 0 and j == 0) else vr(ACC+16*nt,16)
                    a(f"v_mfma_f32_32x32x16_bf16 {vr(ACC+16*nt,16)}, {vr(WF[g%3]+8*u+4*nt,4)}, {vr(OF+32*(c%NR)+4*j,4)}, {cc}")
                    for _ in range(2):
                        if rl:
                            l, t = rl.pop(0); a(l); LQ.append(t)
                    if dm:
                        a(dm.pop(0)); Q.append(("w", c+3))
                    k += 1
                    if k == 3 and ((pr == 0 and 1 <= c <= 4) or (pr == 1 and 3 <= c <= 6)): pollrd()
            if c + NR < 8:
                for u in range(2):
                    a(o_load(c+NR, 2*pr+u)); Q.append(("o", c+NR))
            if c == 6 and pr == 0:
                a(f"buffer_load_dword v{vFb}, v{v4}, s[{WS}:{WS+3}], s53 offen sc1"); Q.append(("f", 7))
                a(f"buffer_load_dword v{vG}, v{vFl}, s[{WS}:{WS+3}], s67 offen sc1"); Q.append(("f", 7))
    stamp(a, cfg, 12)
    a(f"s_cmp_eq_u32 s69, 1\ns_cbranch_scc1 L_k2_haveb")
    poll("b", v4, 53, 1)
    a(b_dma())
    a("L_k2_haveb:")
    a(f"""
    s_mov_b32 s55, 0
    L_k2_gp:
    v_cmp_eq_u32 vcc, -1, v{vG}
    s_add_u32 s55, s55, 1
    s_cmp_gt_u32 s55, 0x20000
    s_cbranch_scc1 L_k2_gd
    s_cbranch_vccz L_k2_gd
    buffer_load_dword v{vG}, v{vFl}, s[{WS}:{WS+3}], s67 offen sc1
    s_waitcnt vmcnt(0)
    s_branch L_k2_gp
    L_k2_gd:
    """)
    stamp(a, cfg, 13)
    a(f"""
    v_mov_b32 v{vG+1}, v{vG}
    v_sub_f32 v{vG+2}, 1.0, v{vG}
    v_cvt_pk_bf16_f32 v{vG+2}, v{vG+2}, v{vG+2}
    v_lshlrev_b32 v{vG+2}, 16, v{vG+2}
    v_mov_b32 v{vG+3}, v{vG+2}
    s_waitcnt vmcnt(0)
    """)
    for nt in range(2):
        for q in range(4):
            a(f"ds_read_b64_tr_b16 {vr(BF+8*nt+2*q,2)}, v{vBr} offset:{(32*nt+8*q)*64}")
    for i in range(16):
        a(f"v_pk_mul_f32 {vr(ACC+2*i,2)}, {vr(ACC+2*i,2)}, {vr(vG,2)}")
    E = OF
    for nt in range(2):
        a(f"s_waitcnt lgkmcnt({4-4*nt})")
        for qq in range(2):
            for q in (2*qq, 2*qq+1):
                for p in range(2):
                    e = E + 16*nt + 4*q + 2*p; bsrc = BF + 8*nt + 2*q + p
                    a(f"v_lshlrev_b32 v{e}, 16, v{bsrc}\nv_and_b32 v{e+1}, 0xffff0000, v{bsrc}")
                    a(f"v_pk_fma_f32 {vr(e,2)}, {vr(e,2)}, {vr(vG+2,2)}, {vr(ACC+16*nt+4*q+2*p,2)}")
                    a(f"v_cvt_pk_bf16_f32 v{bsrc}, v{e}, v{e+1}")
            b0 = BF + 8*nt + 4*qq
            a(f"v_permlane32_swap_b32 v{b0}, v{b0+2}\nv_permlane32_swap_b32 v{b0+1}, v{b0+3}")
            a(f"buffer_store_dwordx4 {vr(b0,4)}, v{vOo}, s[{OUTS}:{OUTS+3}], s68 offen offset:{64*nt+32*qq}")
    stamp_out(a, cfg, 1, WS, sW)
    return R.hi

def build(cfg, out=OUT):
    ks = [gen_k1(cfg), gen_k2(cfg)]
    head = open(f"cdna_kernels/{NAME}.s.ref").read().split("\n")
    cm = [l for l in head if l.startswith(";") and "@launch" not in l and "Override launch" not in l and "grid=ceil" not in l]
    txt = "\n".join(cm) + "\n" + "\n".join(k[2] for k in ks) + "\n"
    txt += '.amdgcn_target "amdgcn-amd-amdhsa--gfx950"\n.text\n'
    txt += "".join(k[0] for k in ks)
    txt += '.section .rodata,"a"\n' + "".join(k[1] for k in ks)
    open(out, "w").write(txt)

if __name__ == "__main__":
    build(CFG)
    build(dict(CFG, stamp=True), "stamped.s")
    build(dict(CFG, stamp=True, HP=2), "stamped2.s")
```

```python
import sys, importlib
from asmlib import *
g = importlib.import_module(sys.argv[1])
def make(path_out, a_lane, b_lane, mult, wg=0, wave=0):
    g.build(dict(g.CFG, stamp=True), "st.s")
    s = open("st.s").read()
    a = Asm(); kernel_head(a, "dg_kernel")
    base = g.WS_ST + (wg*8+wave)*256
    a(f"""s_cmp_ge_u32 s2, 1
    s_cbranch_scc1 L_dg_end
    s_load_dwordx2 s[6:7], s[0:1], 104
    s_waitcnt lgkmcnt(0)""")
    srd(a, 8, 6, 0x10000000)
    a(f"""v_mov_b32 v1, 0
    s_mov_b32 s16, {base + 4*a_lane}
    s_mov_b32 s17, {base + 4*b_lane}
    buffer_load_dword v2, v1, s[8:11], s16 offen
    buffer_load_dword v3, v1, s[8:11], s17 offen
    s_memrealtime s[20:21]
    s_waitcnt vmcnt(0) lgkmcnt(0)
    v_sub_u32 v2, v3, v2
    s_nop 1
    v_readfirstlane_b32 s18, v2
    s_nop 1
    s_mul_i32 s18, s18, {mult}
    s_min_u32 s18, s18, 50000
    L_dg_spin:
    s_memrealtime s[22:23]
    s_waitcnt lgkmcnt(0)
    s_sub_u32 s24, s22, s20
    s_cmp_lt_u32 s24, s18
    s_cbranch_scc1 L_dg_spin
    L_dg_end:
    s_endpgm""")
    lines = s.split("\n")
    i = next(i for i, l in enumerate(lines) if l.startswith("; @launch"))
    lines[i] = lines[i].replace("; @launch grid", f"; @launch kernel={g.KNAME} grid")
    lines.insert(i+1, "; @launch kernel=dg_kernel grid=(1,1,1) block=(64,1,1) lds=0")
    s = "\n".join(l for l in lines if "Override launch" not in l and "grid=ceil" not in l)
    s = s.replace('.section .rodata,"a"\n', a.text() + '.section .rodata,"a"\n' + kernel_desc("dg_kernel", 32, 32))
    open(path_out, "w").write(s)
make("a.s", 32, 32, 0)
make("b.s", 32, 63, 4)
make("c.s", 32, 17, 4)
make("d.s", 32, 3, 4)
make("e.s", 17, 22, 4)
make("f.s", 22, 63, 4)
```

```python
import sys, importlib
from asmlib import *
g = importlib.import_module(sys.argv[1])
def make(path_out, mode, mult):
    g.build(dict(g.CFG, stamp=True), "st.s")
    s = open("st.s").read()
    base = g.WS_ST
    PRE = g.WS_ST + 0x200000
    p = Asm(); kernel_head(p, "pre_kernel")
    p(f"""s_cmp_ge_u32 s2, 1
    s_cbranch_scc1 L_pre_end
    s_memrealtime s[22:23]
    s_load_dwordx2 s[6:7], s[0:1], 104
    s_waitcnt lgkmcnt(0)""")
    srd(p, 8, 6, 0x10000000)
    p(f"""s_memrealtime s[20:21]
    v_mov_b32 v1, 0
    s_mov_b32 s16, {PRE}
    s_waitcnt lgkmcnt(0)
    v_mov_b32 v2, s20
    v_mov_b32 v3, s22
    buffer_store_dwordx2 v[2:3], v1, s[8:11], s16 offen
    L_pre_end:
    s_endpgm""")
    a = Asm(); kernel_head(a, "dg_kernel")
    a(f"""s_cmp_ge_u32 s2, 1
    s_cbranch_scc1 L_dg_end
    s_memrealtime s[26:27]
    s_load_dwordx2 s[6:7], s[0:1], 104
    s_waitcnt lgkmcnt(0)""")
    srd(a, 8, 6, 0x10000000)
    A, B = {"pre2start": (PRE, base+4*32), "end2dg": (base+4*63, base+4*63), "none": (PRE, PRE), "karg": (PRE+4, PRE)}[mode]
    a(f"""v_mov_b32 v1, 0
    s_mov_b32 s16, {A}
    s_mov_b32 s17, {B}
    buffer_load_dword v2, v1, s[8:11], s16 offen
    buffer_load_dword v3, v1, s[8:11], s17 offen
    s_waitcnt vmcnt(0) lgkmcnt(0)
    {"v_mov_b32 v3, s26" if mode == "end2dg" else ""}
    s_memrealtime s[20:21]
    v_sub_u32 v2, v3, v2
    s_nop 1
    v_readfirstlane_b32 s18, v2
    s_nop 1
    s_mul_i32 s18, s18, {mult}
    s_min_u32 s18, s18, 50000
    s_waitcnt lgkmcnt(0)
    L_dg_spin:
    s_memrealtime s[22:23]
    s_waitcnt lgkmcnt(0)
    s_sub_u32 s24, s22, s20
    s_cmp_lt_u32 s24, s18
    s_cbranch_scc1 L_dg_spin
    L_dg_end:
    s_endpgm""")
    lines = s.split("\n")
    i = next(i for i, l in enumerate(lines) if l.startswith("; @launch"))
    lines[i] = lines[i].replace("; @launch grid", f"; @launch kernel={g.KNAME} grid")
    lines.insert(i+1, "; @launch kernel=dg_kernel grid=(1,1,1) block=(64,1,1) lds=0")
    lines.insert(i, "; @launch kernel=pre_kernel grid=(1,1,1) block=(64,1,1) lds=0")
    s = "\n".join(l for l in lines if "Override launch" not in l and "grid=ceil" not in l)
    s = s.replace('.section .rodata,"a"\n', a.text() + p.text() + '.section .rodata,"a"\n' + kernel_desc("dg_kernel", 32, 32) + kernel_desc("pre_kernel", 32, 32))
    open(path_out, "w").write(s)
make("a.s", "none", 0)
make("b.s", "pre2start", 10)
make("c.s", "end2dg", 10)
make("d.s", "karg", 10)
```
